```python
import torch

def _softmax(x, axis=-1):
    return torch.softmax(x, dim=axis)
def _gelu(x):
    return torch.nn.functional.gelu(x, approximate="tanh")
def _silu(x):
    return torch.nn.functional.silu(x)
def _sigmoid(x):
    return torch.sigmoid(x)
def _layernorm(x, axis=-1, eps=1e-5):
    m = x.mean(dim=axis, keepdim=True)
    v = x.var(dim=axis, keepdim=True, unbiased=False)
    return (x - m) / torch.sqrt(v + eps)
def _scatter_add(tgt, idx, src, axis=0):
    return tgt.clone().index_add_(axis, idx, src)
def _segment_sum(src, seg, n):
    out = torch.zeros((n,) + src.shape[1:], dtype=src.dtype)
    return out.index_add_(0, seg, src)
def _pad(x, pw):
    flat = tuple(v for pair in reversed(pw) for v in pair)
    return torch.nn.functional.pad(x, flat)

kernel_name = 'gated_mix__sliding_local_dilated__dense_activation_mish__prompt'

def setup_inputs():

    _w = (lambda a: (lambda t: t.to(torch.bfloat16) if t.is_floating_point() else t)(torch.as_tensor(a)))
    def _A_setup():
        B, S, D = 1, 2048, 640
        return {
            "x": _w((lambda *s: torch.randn(*s, dtype=torch.bfloat16) * 0.05)(B, S, D)),
            "wqkv": _w((lambda *s: torch.randn(*s, dtype=torch.bfloat16) * 0.8)(D, 3 * D)),
            "wo": _w((lambda *s: torch.randn(*s, dtype=torch.bfloat16) * 0.05)(D, D)),
        }
    _A_in = _A_setup()

    def _B_setup():
        B, S, D, F = 1, 2048, 640, 1728
        return {
            "x": _w((lambda *s: torch.randn(*s, dtype=torch.bfloat16) * 0.05)(B, S, D)),
            "w1": _w((lambda *s: torch.randn(*s, dtype=torch.bfloat16) * 12.8)(D, F) * (D ** -0.5)),
            "b1": _w((lambda *s: torch.randn(*s, dtype=torch.bfloat16) * 0.8)(F)),
            "w2": _w((lambda *s: torch.randn(*s, dtype=torch.bfloat16) * 0.8)(F, D) * (F ** -0.5)),
        }
    _B_in = _B_setup()

    return {
        "A_x": _A_in["x"],
        "A_wqkv": _A_in["wqkv"],
        "A_wo": _A_in["wo"],
        "B_x": _B_in["x"],
        "B_w1": _B_in["w1"],
        "B_b1": _B_in["b1"],
        "B_w2": _B_in["w2"],
        "gate_w": _w((lambda *s: torch.randn(*s, dtype=torch.bfloat16) * 0.05)(640) * 16.0),
    }

def reference(A_x, A_wqkv, A_wo, B_x, B_w1, B_b1, B_w2, gate_w):
    def _A_ref(x, wqkv, wo):
        B, S, D = x.shape
        H = 32; Dh = D // H
        W, dil = 8, 2
        qkv = (lambda x, *d: x.permute(*d))((x @ wqkv).reshape(B, S, 3, H, Dh), 2, 0, 3, 1, 4)
        q, k, v = qkv[0], qkv[1], qkv[2]
        scale = Dh ** -0.5
        pos = torch.arange(S)
        off = torch.arange(W) * dil
        idx = pos[:, None] - off[None, :]
        mask = idx >= 0
        idx_c = torch.where(mask, idx, 0).reshape(-1)
        kg = k[:, :, idx_c, :].reshape(B, H, S, W, Dh)
        vg = v[:, :, idx_c, :].reshape(B, H, S, W, Dh)
        logits = torch.einsum("bhsd,bhswd->bhsw", q, kg) * scale
        logits = torch.where(mask[None, None, :, :], logits, -1e9)
        attn = _softmax(logits, axis=-1)
        o = torch.einsum("bhsw,bhswd->bhsd", attn, vg)
        return (lambda x, *d: x.permute(*d))(o, 0, 2, 1, 3).reshape(B, S, D) @ wo

    def _B_ref(x, w1, b1, w2):
        h = torch.einsum("bsd,df->bsf", x, w1) + b1
        sp = torch.log1p(torch.exp(-torch.abs(h))) + torch.where(h > 0, h, torch.zeros_like(h))
        act = h * torch.tanh(sp)
        return torch.einsum("bsf,fd->bsd", act, w2)

    x = A_x
    g = _sigmoid((x * gate_w).sum(-1, keepdims=True))
    a = _A_ref(x, A_wqkv, A_wo)
    b = _B_ref(x, B_w1, B_b1, B_w2)
    return g * a + (1 - g) * b
```

```python
import re
def check_line(line):
    m = re.search(r"offset:(\d+)", line)
    if m:
        off = int(m.group(1))
        if line.startswith("buffer_"):
            assert off < 4096, line
        elif line.startswith("ds_"):
            assert off < 65536, line
        elif line.startswith("global_"):
            assert off < 4096, line
class Asm:
    def __init__(self):
        self.L = []
        self.nlab = 0
    def __call__(self, s):
        for line in s.split("\n"):
            line = line.strip()
            if line:
                check_line(line)
                self.L.append("    " + line if not line.endswith(":") else line)
    def label(self, name):
        self.L.append(name + ":")
    def newlabel(self, p="L"):
        self.nlab += 1
        return f"{p}_{self.nlab}"
    def comment(self, s):
        self.L.append("    ; " + s)
    def text(self):
        return "\n".join(self.L) + "\n"

def vr(b, n=1):
    return f"v{b}" if n == 1 else f"v[{b}:{b+n-1}]"
def ar(b, n=1):
    return f"a{b}" if n == 1 else f"a[{b}:{b+n-1}]"
def sr(b, n=1):
    return f"s{b}" if n == 1 else f"s[{b}:{b+n-1}]"

def kernel_header(a, name):
    a.L.append(f".globl {name}")
    a.L.append(".p2align 8")
    a.L.append(f".type {name},@function")
    a.L.append(f"{name}:")

def descriptor(name, nvgpr, nsgpr, accum):
    return f""".amdhsa_kernel {name}
  .amdhsa_next_free_vgpr {nvgpr}
  .amdhsa_next_free_sgpr {nsgpr}
  .amdhsa_accum_offset {accum}
  .amdhsa_group_segment_fixed_size 0
  .amdhsa_kernarg_size 88
  .amdhsa_user_sgpr_count 2
  .amdhsa_user_sgpr_kernarg_segment_ptr 1
  .amdhsa_system_sgpr_workgroup_id_x 1
.end_amdhsa_kernel
"""
```

```python
from asmlib import *
from k3 import WS_A3, WS_W3, WS_G

ROWB = 480
KST = 32 * ROWB
STG = 2 * KST
SK = 336

LOG2E = 1.4426950408889634
import struct
def f32(x): return "0x%08x" % struct.unpack("<I", struct.pack("<f", x))[0]

def gen_k1(a, name, R=4, stamps=False, rot=True, abl=""):
    kernel_header(a, name)
    V_DMA = 1
    V_LANE = 9
    V_A = 10
    V_TR = 13
    ACC = 32
    BF = 0
    AFR = 120
    def bfrag(buf, t): return BF + buf * 60 + t * 4
    def afrag(s, rt): return AFR + s * 12 + rt * 4
    S_X = 24; S_W = 28
    a("s_cmp_ge_u32 s2, 256")
    a("s_cbranch_scc1 K1_done")
    if stamps: a("s_memtime s[90:91]")
    a("s_load_dwordx4 s[4:7], s[0:1], 0")
    a("s_load_dwordx2 s[8:9], s[0:1], 16")
    a("s_load_dwordx4 s[12:15], s[0:1], 32")
    a("s_load_dwordx4 s[16:19], s[0:1], 48")
    a("s_load_dwordx2 s[10:11], s[0:1], 80")
    a("v_lshrrev_b32 v20, 6, v0")
    a(f"v_and_b32 v{V_LANE}, 63, v0")
    a("v_readfirstlane_b32 s20, v20")
    a("s_and_b32 s3, s2, 7")
    a("s_lshr_b32 s21, s2, 3")
    a("s_lshr_b32 s22, s3, 1")
    a("s_lshl_b32 s22, s22, 2")
    a("s_lshr_b32 s23, s21, 3")
    a("s_add_u32 s22, s22, s23")
    a("s_and_b32 s21, s21, 7")
    a("s_mul_i32 s36, s23, 5")
    a("s_lshr_b32 s36, s36, 1")
    a("s_add_u32 s36, s36, s21")
    a("s_cmp_ge_u32 s36, 10")
    a("s_cselect_b32 s37, 10, 0")
    a("s_sub_u32 s36, s36, s37")
    if not rot: a("s_mov_b32 s36, 0")
    a("s_and_b32 s23, s3, 1")
    a("s_lshl_b32 s23, s23, 2")
    a("s_and_b32 s37, s21, 3")
    a("s_add_u32 s23, s23, s37")
    a("s_lshr_b32 s21, s21, 2")
    a(f"v_and_b32 v20, 15, v{V_LANE}")
    a(f"v_lshrrev_b32 v21, 4, v{V_LANE}")
    a("s_lshl_b32 s37, s22, 7")
    a("s_lshl_b32 s38, s20, 5")
    a("s_add_u32 s38, s38, s37")
    a("v_add_u32 v22, s38, v20")
    a("v_mul_u32_u24 v22, 0x500, v22")
    a(f"v_lshl_add_u32 v{V_A}, v21, 4, v22")
    a(f"v_add_u32 v{V_A+1}, 0x5000, v{V_A}")
    a("s_sub_u32 s37, s37, 16")
    a("v_add_u32 v22, s37, v20")
    a("s_movk_i32 s37, 0x500")
    a("v_mul_lo_u32 v22, v22, s37")
    a(f"v_lshl_add_u32 v{V_A+2}, v21, 4, v22")
    a("s_lshl_b32 s37, s20, 4")
    for i in range(8):
        a(f"v_add_u32 v22, {i*64}, v{V_LANE}")
        a("v_mul_u32_u24 v23, 0x889, v22")
        a("v_lshrrev_b32 v23, 16, v23")
        a("v_mul_u32_u24 v24, 30, v23")
        a(f"v_sub_u32 v{40+i}, v22, v24")
        a(f"v_mov_b32 v{56+i}, v23")
        a("v_add_u32 v23, s37, v23")
        a("v_and_b32 v24, 0x33, v23")
        a("v_and_b32 v25, 4, v23")
        a("v_lshl_or_b32 v24, v25, 1, v24")
        a("v_and_b32 v25, 8, v23")
        a("v_lshrrev_b32 v25, 1, v25")
        a(f"v_or_b32 v{48+i}, v24, v25")
    a(f"v_lshrrev_b32 v22, 5, v{V_LANE}")
    a("v_lshlrev_b32 v22, 4, v22")
    a(f"v_bfe_u32 v23, v{V_LANE}, 2, 3")
    a("v_add_u32 v22, v22, v23")
    a(f"v_mul_u32_u24 v22, {ROWB}, v22")
    a(f"v_and_b32 v23, 3, v{V_LANE}")
    a(f"v_lshl_add_u32 v{V_TR}, v23, 3, v22")
    a("s_mul_i32 s39, s20, 7680")
    a("s_mov_b32 s27, 0x20000")
    a("s_mov_b32 s31, 0x20000")
    a(f"s_mov_b32 s26, {2048*1280}")
    a("s_lshl_b32 s40, s36, 7")
    a("s_waitcnt lgkmcnt(0)")
    a("s_mov_b32 s24, s4")
    a("s_mov_b32 s25, s5")
    a("s_cmp_eq_u32 s21, 1")
    a("s_cbranch_scc1 K1_ffn")
    variant(a, "Q", R, stamps, abl, locals())
    a.label("K1_ffn")
    variant(a, "F", R, stamps, abl, locals())
    a.label("K1_done")
    a("s_endpgm")
    lds = max(R * STG, 144 * SK)
    return dict(lds=lds, nvgpr=256 + 168, accum=256, nsgpr=96)

def variant(a, kind, R, stamps, abl, env):
    V_DMA, V_LANE, V_A, V_TR, ACC = env["V_DMA"], env["V_LANE"], env["V_A"], env["V_TR"], env["ACC"]
    bfrag, afrag = env["bfrag"], env["afrag"]
    Q = kind == "Q"
    NT = 15 if Q else 14
    NA = 3 if Q else 2
    pitch = 3840 if Q else 3456
    P = "K1" + kind
    def acc(rt, t): return ACC + (rt * NT + t) * 4
    HALO = ACC + 2 * NT * 4
    NACC = 2 * NT * 4 + (12 if Q else 0)
    if Q:
        a("s_mul_i32 s37, s23, 160")
        for i in range(8):
            a(f"v_mul_u32_u24 v24, 0x667, v{40+i}")
            a("v_lshrrev_b32 v24, 14, v24")
            a("v_mul_u32_u24 v24, 1120, v24")
            a(f"v_lshl_add_u32 v24, v{40+i}, 4, v24")
            a(f"v_mul_u32_u24 v25, {pitch}, v{48+i}")
            a("v_add3_u32 v24, v24, v25, s37")
            a(f"v_subrev_u32 v{V_DMA+i}, {(i%4)*1024}, v24")
        a("s_mov_b32 s28, s6")
        a("s_mov_b32 s29, s7")
        a(f"s_mov_b32 s41, {640*pitch}")
    else:
        a("s_mul_i32 s42, s23, 7")
        a("s_cmp_eq_u32 s23, 7")
        a("s_cselect_b32 s42, 48, s42")
        a("s_cmp_lt_u32 s23, 6")
        a("s_cselect_b32 s43, 28, 24")
        a("s_lshl_b32 s37, s42, 6")
        a("v_mov_b32 v26, 0x7f000000")
        a("s_mov_b32 s32, s14")
        a("s_mov_b32 s33, s15")
        a("s_mov_b32 s34, 3456")
        a("s_mov_b32 s35, 0x20000")
        a("v_lshlrev_b32 v24, 3, v21")
        a("v_add_u32 v24, s37, v24")
        for t in range(NT):
            a(f"buffer_load_dwordx2 {vr(164+2*t,2)}, v24, s[32:35], 0 offen offset:{32*t}")
        for i in range(8):
            a(f"v_mul_u32_u24 v25, {pitch}, v{48+i}")
            a(f"v_lshl_add_u32 v24, v{40+i}, 4, v25")
            a("v_add_u32 v24, s37, v24")
            a(f"v_subrev_u32 v24, {(i%4)*1024}, v24")
            a(f"v_cmp_gt_u32 vcc, s43, v{40+i}")
            a("s_nop 1")
            a(f"v_cndmask_b32 v{V_DMA+i}, v26, v24, vcc")
        a("s_mov_b32 s28, s12")
        a("s_mov_b32 s29, s13")
        a(f"s_mov_b32 s41, {640*pitch}")
    a("s_mov_b32 s30, s41")
    a(f"s_mul_i32 s44, s36, {64*pitch}")
    a("s_mov_b32 s45, s36")
    a("s_mov_b32 s46, 0")
    a("s_lshl_b32 s47, s36, 1")
    a("s_mov_b32 s48, 0")
    def dma_list(slot_sreg_or_imm):
        L = []
        L.append(["s_add_u32 m0, s49, s39", "s_nop 0", f"buffer_load_dwordx4 v{V_DMA}, s[28:31], s44 offen lds"])
        for i in range(1, 4):
            L.append([f"buffer_load_dwordx4 v{V_DMA+i}, s[28:31], s44 offen offset:{i*1024} lds"])
        L.append(["s_add_u32 m0, m0, 4096", "s_nop 0", f"buffer_load_dwordx4 v{V_DMA+4}, s[28:31], s44 offen lds"])
        for i in range(5, 7):
            L.append([f"buffer_load_dwordx4 v{V_DMA+i}, s[28:31], s44 offen offset:{(i-4)*1024} lds"])
        L.append(["s_mov_b32 exec_hi, 0", f"buffer_load_dwordx4 v{V_DMA+7}, s[28:31], s44 offen offset:3072 lds", "s_mov_b32 exec_hi, -1"])
        L.append(["s_add_u32 s45, s45, 1", f"s_add_u32 s44, s44, {64*pitch}", "s_cmp_eq_u32 s45, 10",
                  "s_cselect_b32 s45, 0, s45", "s_cselect_b32 s44, 0, s44"])
        L.append(["s_add_u32 s46, s46, 1", "s_cmp_ge_u32 s46, 10", "s_cselect_b32 s30, 0, s41",
                  f"s_add_u32 s49, s49, {STG}", f"s_cmp_eq_u32 s49, {R*STG}", "s_cselect_b32 s49, 0, s49"])
        return L
    def a_list(aset):
        L = []
        for rt in range(NA):
            L.append([f"buffer_load_dwordx4 {ar(afrag(aset, rt), 4)}, v{V_A+rt}, s[24:27], s40 offen"])
        L.append(["s_add_u32 s47, s47, 1", "s_add_u32 s40, s40, 64", "s_cmp_eq_u32 s47, 20",
                  "s_cselect_b32 s47, 0, s47", "s_cselect_b32 s40, 0, s40"])
        L.append(["s_add_u32 s48, s48, 1", "s_cmp_ge_u32 s48, 20", f"s_cselect_b32 s26, 0, s50"])
        return L
    a(f"s_mov_b32 s50, {2048*1280}")
    a("s_mov_b32 s49, 0")
    seq = []
    seq += a_list(0)
    seq += dma_list(0)
    for s in range(1, R - 1):
        seq += dma_list(s)
    seq += a_list(1)
    seq += a_list(2)
    seq += dma_list(R - 1)
    for g in seq:
        for i in g: a(i)
    if Q:
        a("v_mul_u32_u24 v24, 40, v23")
        a(f"v_add3_u32 v{V_TR+1}, v22, v24, 32")
        tab = {0: (0, 0, 0, 0, 0), 1: (96, 96, -96, 0, 0), 2: (192, 192, 0, -192, 0), 3: (288, 0, 0, 0, -288)}
        for k in range(5):
            a(f"s_mov_b32 s{52+k}, 0")
        for w in (1, 2, 3):
            a(f"s_cmp_eq_u32 s20, {w}")
            for k in range(5):
                if tab[w][k]: a(f"s_cselect_b32 s{52+k}, {tab[w][k]}, s{52+k}")
        for k in range(5):
            a(f"v_add_u32 v{V_TR+2+k}, s{52+k}, v{V_TR}")
    NTR = 7 if Q else 1
    def tr_addr(t):
        if not Q: return V_TR, 32 * t
        if t < 4: return V_TR, 40 * t
        if t == 4: return V_TR + 1, 0
        s = t - 5
        reg = V_TR + 2 + (0 if s == 0 else 1 if s < 3 else 2 if s < 6 else 3 if s < 9 else 4)
        return reg, 160 + 32 * s
    def tr_list(buf, kk):
        L = []
        for t in range(NT):
            reg, off = tr_addr(t)
            for h in range(2):
                L.append([f"ds_read_b64_tr_b16 {ar(bfrag(buf, t) + 2*h, 2)}, v{reg} offset:{kk*KST + h*8*ROWB + off}"])
        return L
    def mfma_list(buf, aset):
        L = []
        for t in range(NT):
            for rt in range(2):
                L.append(f"v_mfma_f32_16x16x32_bf16 {vr(acc(rt,t),4)}, {ar(bfrag(buf,t),4)}, {ar(afrag(aset,rt),4)}, {vr(acc(rt,t),4)}")
            if Q and 5 <= t < 8:
                hh = t - 5
                L.append(f"v_mfma_f32_16x16x32_bf16 {vr(HALO+4*hh,4)}, {ar(bfrag(buf,t),4)}, {ar(afrag(aset,2),4)}, {vr(HALO+4*hh,4)}")
        return L
    if Q:
        for r in range(NACC): a(f"v_mov_b32 v{ACC+r}, 0")
    else:
        a(f"s_waitcnt vmcnt({R*8 + 3*NA})")
        for t in range(NT):
            b = 164 + 2 * t
            for d in (acc(0, t), acc(1, t)):
                a(f"v_lshlrev_b32 v{d}, 16, v{b}")
                a(f"v_and_b32 v{d+1}, 0xffff0000, v{b}")
                a(f"v_lshlrev_b32 v{d+2}, 16, v{b+1}")
                a(f"v_and_b32 v{d+3}, 0xffff0000, v{b+1}")
    nA = NA; nD = 8
    younger = (R - 2) * nD + 2 * nA + nD
    a(f"s_waitcnt vmcnt({younger})")
    a("s_barrier")
    for g in tr_list(0, 0):
        for i in g: a(i)
    a("s_mov_b32 s51, 5")
    a(f"s_mov_b32 s57, {STG}")
    a("s_mov_b32 s58, 1")
    a(f"s_mov_b32 s59, {STG}")
    a.label(f"{P}_loop")
    def interleave(mf, groups, rate):
        gi = 0; credit = 0.0
        for m in mf:
            a(m)
            credit += rate
            while credit >= 1.0 and gi < len(groups):
                for i in groups[gi]: a(i)
                gi += 1; credit -= 1.0
        while gi < len(groups):
            for i in groups[gi]: a(i)
            gi += 1
    for st in range(2):
        k0 = 2 * st; k1 = 2 * st + 1
        a(f"s_waitcnt vmcnt({nD + nA + nA + nD}) lgkmcnt(0)")
        groups = tr_list(1, 1) + a_list((k0 + 3) % 4)
        interleave(mfma_list(0, k0), groups, 1.4)
        for r in range(NTR):
            a(f"v_add_u32 v{V_TR+r}, s57, v{V_TR+r}")
        a("s_add_u32 s58, s58, 1")
        a(f"s_cmp_eq_u32 s58, {R}")
        a("s_cselect_b32 s58, 0, s58")
        a(f"s_cselect_b32 s57, {-(R-1)*STG}, s59")
        a(f"s_waitcnt vmcnt({nA + nD + nA}) lgkmcnt(0)")
        a("s_barrier")
        groups = tr_list(0, 0) + a_list((k1 + 3) % 4) + dma_list(None)
        interleave(mfma_list(1, k1), groups, 1.5)
    a("s_sub_u32 s51, s51, 1")
    a("s_cmp_lg_u32 s51, 0")
    a(f"s_cbranch_scc1 {P}_loop")
    a("s_waitcnt vmcnt(0) lgkmcnt(0)")
    a(f"s_add_u32 s32, s10, {WS_A3}")
    a("s_addc_u32 s33, s11, 0")
    a(f"s_mov_b32 s34, {32*74*4096}")
    a("s_mov_b32 s35, 0x20000")
    a("s_lshl_b32 s60, s22, 3")
    a("s_lshl_b32 s61, s20, 1")
    a("s_add_u32 s60, s60, s61")
    a("s_lshr_b32 s61, s60, 2")
    a("s_mul_i32 s61, s61, 296")
    a("s_and_b32 s60, s60, 3")
    a("s_add_u32 s60, s60, s61")
    a("s_lshl_b32 s60, s60, 10")
    repack_issue(a, env)
    if Q: attn_epilogue(a, env, acc, HALO)
    else: ffn_epilogue(a, env, acc)
    repack_store(a, env)
    if stamps:
        a("s_memtime s[92:93]")
        a("s_waitcnt lgkmcnt(0)")
        a("s_sub_u32 s92, s92, s90")
        a(f"s_add_u32 s32, s10, {33<<20}")
        a("s_addc_u32 s33, s11, 0")
        a("s_mov_b32 s34, 0x100000")
        a("s_lshl_b32 s36, s2, 2")
        a("s_add_u32 s36, s36, s20")
        a("s_lshl_b32 s36, s36, 2")
        a("v_mov_b32 v10, s36")
        a("v_mov_b32 v11, s92")
        a("buffer_store_dword v11, v10, s[32:35], 0 offen")
    a("s_endpgm")

RP = 224
def repack_issue(a, env):
    V_LANE = env["V_LANE"]
    a(f"v_and_b32 v20, 15, v{V_LANE}")
    a(f"v_lshrrev_b32 v21, 4, v{V_LANE}")
    a("v_mul_u32_u24 v248, 5120, v21")
    a("v_lshl_add_u32 v248, v20, 1, v248")
    a("s_mov_b32 s67, 0x20000")
    a(f"s_mov_b32 s81, {1728*1280}")
    for i in range(3):
        a("s_mul_i32 s62, s2, 3")
        a(f"s_add_u32 s62, s62, {i}")
        a("s_mul_i32 s63, s62, 0x667")
        a("s_lshr_b32 s63, s63, 14")
        a("s_mul_i32 s68, s63, 10")
        a("s_sub_u32 s68, s62, s68")
        a("s_lshl_b32 s68, s68, 2")
        a("s_add_u32 s68, s68, s20")
        a(f"s_mov_b32 s{70+2*i}, s63")
        a(f"s_mov_b32 s{71+2*i}, s68")
        a("s_sub_u32 s69, s63, 20")
        a("s_cmp_lt_u32 s63, 20")
        a("s_cselect_b32 s64, s8, s16")
        a("s_cselect_b32 s65, s9, s17")
        a(f"s_cselect_b32 s66, {640*1280}, s81")
        a("s_cselect_b32 s69, s63, s69")
        a("s_mul_i32 s69, s69, 40960")
        a("s_lshl_b32 s68, s68, 5")
        a("s_add_u32 s69, s69, s68")
        a("s_add_u32 s68, s69, 20480")
        for h in range(2):
            for e in range(4):
                a(f"buffer_load_ushort v{RP+8*i+4*h+e}, v248, s[64:67], s{69 if h == 0 else 68} offen offset:{e*1280}")

def repack_store(a, env):
    V_LANE = env["V_LANE"]
    a(f"s_add_u32 s64, s10, {WS_W3}")
    a("s_addc_u32 s65, s11, 0")
    a(f"s_mov_b32 s66, {8*74*5120}")
    a(f"v_lshlrev_b32 v248, 4, v{V_LANE}")
    a("s_waitcnt vmcnt(0)")
    for i in range(3):
        b = RP + 8 * i
        a(f"s_mul_i32 s62, s{71+2*i}, 52")
        a("s_lshr_b32 s62, s62, 8")
        a("s_mul_i32 s63, s62, 5")
        a(f"s_sub_u32 s63, s{71+2*i}, s63")
        a("s_mul_i32 s62, s62, 74")
        a(f"s_add_u32 s62, s62, s{70+2*i}")
        a("s_mul_i32 s62, s62, 5")
        a("s_add_u32 s62, s62, s63")
        a("s_lshl_b32 s62, s62, 10")
        a(f"s_cmp_ge_u32 s{70+2*i}, 74")
        a("s_cselect_b32 s62, 0x7f000000, s62")
        for d in range(4):
            a(f"v_lshl_or_b32 v{b+d}, v{b+2*d+1}, 16, v{b+2*d}")
        a(f"buffer_store_dwordx4 {vr(b,4)}, v248, s[64:67], s62 offen")

def ffn_epilogue(a, env, acc):
    V_LANE = env["V_LANE"]
    a("s_lshl_b32 s62, s22, 7")
    a("s_lshl_b32 s63, s23, 4")
    a("s_add_u32 s62, s62, s63")
    a("s_lshl_b32 s63, s20, 2")
    a("s_add_u32 s62, s62, s63")
    a("v_add_u32 v200, s62, v21")
    a("v_mul_u32_u24 v201, 80, v20")
    a("v_mul_u32_u24 v202, 0x500, v200")
    a("v_add_u32 v202, v202, v201")
    a("s_mov_b32 s26, s50")
    a("s_mov_b32 s76, s18")
    a("s_mov_b32 s77, s19")
    a("s_mov_b32 s78, 1280")
    a("s_mov_b32 s79, 0x20000")
    for i in range(5):
        a(f"buffer_load_dwordx4 {vr(160+4*i,4)}, v202, s[24:27], 0 offen offset:{16*i}")
        a(f"buffer_load_dwordx4 {vr(180+4*i,4)}, v201, s[76:79], 0 offen offset:{16*i}")
    a("s_add_u32 s62, s42, 20")
    a("s_lshl_b32 s62, s62, 12")
    a("s_add_u32 s62, s62, s60")
    a(f"v_lshlrev_b32 v203, 4, v{V_LANE}")
    a(f"s_mov_b32 s80, {f32(LOG2E)}")
    T = 204
    for p in range(7):
        if p == 6:
            a("s_cmp_lt_u32 s23, 6")
            a("s_cselect_b32 s62, s62, 0x7f000000")
        for rt in range(2):
            regs = [acc(rt, 2*p) + e for e in range(4)] + [acc(rt, 2*p+1) + e for e in range(4)]
            for i, r in enumerate(regs): a(f"v_mul_f32 v{T+i}, s80, v{r}")
            for i in range(8): a(f"v_exp_f32 v{T+i}, v{T+i}")
            for i in range(8): a(f"v_add_f32 v{T+i}, 1.0, v{T+i}")
            for i in range(8): a(f"v_fma_f32 v{T+i}, v{T+i}, v{T+i}, 1.0")
            for i in range(8): a(f"v_rcp_f32 v{T+i}, v{T+i}")
            for i in range(8): a(f"v_fma_f32 v{T+i}, v{T+i}, -2.0, 1.0")
            for i, r in enumerate(regs): a(f"v_mul_f32 v{T+i}, v{T+i}, v{r}")
            d = acc(rt, 2*p)
            for i in range(4): a(f"v_cvt_pk_bf16_f32 v{d+i}, v{T+2*i}, v{T+2*i+1}")
            a(f"buffer_store_dwordx4 {vr(d,4)}, v203, s[32:35], s62 offen offset:{rt*1024}")
        a("s_add_u32 s62, s62, 4096")
    a("s_waitcnt vmcnt(14)")
    a("v_mov_b32 v204, 0")
    for i in range(20):
        a(f"v_dot2c_f32_bf16 v204, v{160+i}, v{180+i}")
    a("s_nop 3")
    for sh in (8, 4, 2, 1):
        a(f"v_add_f32_dpp v204, v204, v204 row_ror:{sh} row_mask:0xf bank_mask:0xf")
        a("s_nop 1")
    a("v_mul_f32 v204, s80, v204")
    a("v_exp_f32 v204, -v204")
    a("s_nop 0")
    a("v_add_f32 v204, 1.0, v204")
    a("v_rcp_f32 v204, v204")
    a(f"s_add_u32 s76, s10, {WS_G}")
    a("s_addc_u32 s77, s11, 0")
    a("s_mov_b32 s78, 8192")
    a("v_lshlrev_b32 v200, 2, v200")
    a("v_cmp_eq_u32 vcc, 0, v20")
    a("s_and_saveexec_b64 s[82:83], vcc")
    a("buffer_store_dword v204, v200, s[76:79], 0 offen")
    a("s_mov_b64 exec, s[82:83]")

def attn_epilogue(a, env, acc, HALO):
    V_LANE, V_TR = env["V_LANE"], env["V_TR"]
    a("s_barrier")
    a("s_lshl_b32 s62, s20, 5")
    a("s_add_u32 s62, s62, 16")
    a("v_add_u32 v164, s62, v20")
    a(f"v_mul_u32_u24 v164, {SK}, v164")
    a("v_lshl_add_u32 v164, v21, 3, v164")
    a(f"v_mul_u32_u24 v170, {SK}, v20")
    a("v_lshl_add_u32 v170, v21, 3, v170")
    for k in range(5):
        a(f"v_add_u32 v{165+k}, s{52+k}, v164")
    a("v_add_u32 v171, s52, v170")
    a("v_add_u32 v172, s53, v170")
    def wreg(s): return 165 + (0 if s == 0 else 1 if s < 3 else 2 if s < 6 else 3 if s < 9 else 4)
    for rt in range(2):
        for s in range(10):
            r = acc(rt, 5 + s)
            a(f"v_cvt_pk_bf16_f32 v{r}, v{r}, v{r+1}")
            a(f"v_cvt_pk_bf16_f32 v{r+1}, v{r+2}, v{r+3}")
            a(f"ds_write_b64 v{wreg(s)}, {vr(r,2)} offset:{rt*16*SK + 32*s}")
    for hh in range(3):
        r = HALO + 4 * hh
        a(f"v_cvt_pk_bf16_f32 v{r}, v{r}, v{r+1}")
        a(f"v_cvt_pk_bf16_f32 v{r+1}, v{r+2}, v{r+3}")
        a(f"ds_write_b64 v{171 if hh == 0 else 172}, {vr(r,2)} offset:{32*hh}")
    a("v_mov_b32 v174, 0")
    a("v_mov_b32 v175, 0")
    a("v_and_b32 v173, 1, v21")
    a("v_lshlrev_b32 v173, 3, v173")
    a("v_lshlrev_b32 v176, 3, v21")
    a("v_sub_u32 v173, v173, v176")
    a("v_add_u32 v176, v164, v173")
    a(f"ds_write_b64 v176, v[174:175] offset:320")
    a(f"ds_write_b64 v176, v[174:175] offset:{16*SK+320}")
    a("v_add_u32 v176, v170, v173")
    a(f"ds_write_b64 v176, v[174:175] offset:320")
    for rt in range(2):
        tb = acc(rt, 4)
        a(f"v_cvt_pk_bf16_f32 v{tb}, v{tb}, v{tb+1}")
        a(f"v_cvt_pk_bf16_f32 v{tb+1}, v{tb+2}, v{tb+3}")
    for h in range(4):
        a(f"v_cmp_eq_u32 s[{84}:{85}], {h}, v21")
        for rt in range(2):
            r = acc(rt, h); tb = acc(rt, 4)
            a(f"v_cvt_pk_bf16_f32 v{r}, v{r}, v{r+1}")
            a(f"v_cvt_pk_bf16_f32 v{r+1}, v{r+2}, v{r+3}")
            a(f"v_cndmask_b32 v{r+2}, 0, v{tb}, s[84:85]")
            a(f"v_cndmask_b32 v{r+3}, 0, v{tb+1}, s[84:85]")
    a("v_and_b32 v177, 1, v20")
    a("v_lshl_add_u32 v178, v21, 2, v177")
    a("v_cmp_eq_u32 s[84:85], 1, v177")
    a("v_cmp_le_u32 s[86:87], v178, v20")
    a("v_add_u32 v178, 2, v178")
    a("v_cmp_le_u32 s[88:89], v178, v20")
    a("v_mov_b32 v178, 0xffff")
    a("v_mov_b32 v179, 0xffff0000")
    a("v_cndmask_b32 v177, v178, v179, s[84:85]")
    a("v_cndmask_b32 v180, 0, v177, s[86:87]")
    a("v_cndmask_b32 v181, v177, 0, s[86:87]")
    a("v_cndmask_b32 v182, 0, v177, s[88:89]")
    a("v_cndmask_b32 v183, v177, 0, s[88:89]")
    a("s_or_b32 s62, s22, s20")
    a("s_cmp_eq_u32 s62, 0")
    a(f"s_cselect_b32 s62, {f32(-1e30)}, 0")
    a("v_mov_b32 v178, s62")
    a("v_cndmask_b32 v184, v178, 0, s[86:87]")
    a("v_cndmask_b32 v185, v178, 0, s[88:89]")
    a("s_lshl_b32 s62, s20, 5")
    a("v_add_u32 v186, s62, v20")
    a(f"v_mul_u32_u24 v186, {SK}, v186")
    a("v_add_u32 v187, 32, v186")
    a("v_lshl_add_u32 v186, v21, 3, v186")
    a(f"v_lshrrev_b32 v188, 2, v{V_LANE}")
    a("v_add_u32 v188, s62, v188")
    a(f"v_mul_u32_u24 v188, {SK}, v188")
    a(f"v_and_b32 v189, 3, v{V_LANE}")
    for h in range(4):
        a(f"v_cmp_eq_u32 vcc, {h}, v189")
        a(f"v_mov_b32 v190, {160+40*h+32}")
        a("v_mov_b32 v191, 320")
        a("v_cndmask_b32 v190, v191, v190, vcc")
        a(f"v_add_u32 v{192+h}, v188, v190")
    a("v_lshl_add_u32 v188, v189, 3, v188")
    a("s_mul_i32 s62, s23, 20")
    def out_addr(dst, gexpr_reg):
        a(f"v_lshrrev_b32 v200, 3, v{gexpr_reg}")
        a("v_lshlrev_b32 v200, 12, v200")
        a(f"v_and_b32 v201, 3, v{gexpr_reg}")
        a("v_lshl_add_u32 v200, v201, 8, v200")
        a(f"v_bfe_u32 v201, v{gexpr_reg}, 2, 1")
        a("v_lshl_add_u32 v200, v201, 3, v200")
        a(f"v_lshl_add_u32 v{dst}, v20, 4, v200")
    for h in range(4):
        a(f"s_add_u32 s63, s62, {5*h}")
        a("v_add_u32 v202, s63, v21")
        out_addr(196 + h, 202)
    a("v_mul_u32_u24 v202, 5, v21")
    a("s_add_u32 s63, s62, 4")
    a("v_add_u32 v202, s63, v202")
    out_addr(203, 202)
    a(f"s_mov_b32 s80, {f32(LOG2E * 20 ** -0.5)}")
    a("s_waitcnt lgkmcnt(0)")
    a("s_barrier")
    KF = acc(0, 5)
    VM = KF + 12; VT = KF + 18; SS = KF + 24
    PF = acc(1, 5)
    OM = PF + 8; OT = PF + 16; TM = PF + 24
    for rt in range(2):
        for e in range(4): a(f"v_mov_b32 v{OT+4*rt+e}, 0")
    for h in range(4):
        for j in range(3):
            a(f"ds_read_b64 {vr(KF+4*j,2)}, v186 offset:{j*16*SK + 40*h}")
            a(f"ds_read_b64 {vr(KF+4*j+2,2)}, v187 offset:{j*16*SK + 40*h}")
        for j in range(3):
            a(f"ds_read_b64_tr_b16 {vr(VM+2*j,2)}, v188 offset:{j*16*SK + 160 + 40*h}")
            a(f"ds_read_b64_tr_b16 {vr(VT+2*j,2)}, v{192+h} offset:{j*16*SK}")
        a("s_waitcnt lgkmcnt(6)")
        for rt in range(2):
            a(f"v_mfma_f32_16x16x32_bf16 {vr(SS+8*rt,4)}, {vr(KF+4*rt,4)}, {vr(acc(rt,h),4)}, 0")
            a(f"v_mfma_f32_16x16x32_bf16 {vr(SS+8*rt+4,4)}, {vr(KF+4*rt+4,4)}, {vr(acc(rt,h),4)}, 0")
        a("s_nop 7")
        for rt in range(2):
            Sp = SS + 8 * rt; Sc = Sp + 4; t = TM + 8 * rt
            a(f"v_cndmask_b32 v{t}, v{Sc}, v{Sc+1}, s[84:85]")
            a(f"v_cndmask_b32 v{t+1}, v{Sp}, v{Sp+1}, s[84:85]")
            a(f"v_cndmask_b32 v{t+2}, v{Sc+2}, v{Sc+3}, s[84:85]")
            a(f"v_cndmask_b32 v{t+3}, v{Sp+2}, v{Sp+3}, s[84:85]")
            a(f"v_cndmask_b32 v{t}, v{t+1}, v{t}, s[86:87]")
            a(f"v_cndmask_b32 v{t+2}, v{t+3}, v{t+2}, s[88:89]")
            if rt == 0:
                a(f"v_fma_f32 v{t}, v{t}, s80, v184")
                a(f"v_fma_f32 v{t+2}, v{t+2}, s80, v185")
            else:
                a(f"v_mul_f32 v{t}, s80, v{t}")
                a(f"v_mul_f32 v{t+2}, s80, v{t+2}")
            a(f"v_max_f32 v{t+1}, v{t}, v{t+2}")
            a(f"v_mov_b32 v{t+3}, v{t+1}")
        a("s_nop 1")
        for rt in range(2):
            t = TM + 8 * rt
            a(f"v_permlane32_swap_b32 v{t+1}, v{t+3}")
        a("s_nop 1")
        for rt in range(2):
            t = TM + 8 * rt
            a(f"v_max_f32 v{t+1}, v{t+1}, v{t+3}")
            a(f"v_mov_b32 v{t+3}, v{t+1}")
        a("s_nop 1")
        for rt in range(2):
            t = TM + 8 * rt
            a(f"v_permlane16_swap_b32 v{t+1}, v{t+3}")
        a("s_nop 1")
        for rt in range(2):
            t = TM + 8 * rt
            a(f"v_max_f32 v{t+1}, v{t+1}, v{t+3}")
            a(f"v_sub_f32 v{t}, v{t}, v{t+1}")
            a(f"v_sub_f32 v{t+2}, v{t+2}, v{t+1}")
            a(f"v_exp_f32 v{t}, v{t}")
            a(f"v_exp_f32 v{t+2}, v{t+2}")
        a("s_nop 0")
        for rt in range(2):
            t = TM + 8 * rt
            a(f"v_add_f32 v{t+1}, v{t}, v{t+2}")
            a(f"v_mov_b32 v{t+3}, v{t+1}")
        a("s_nop 1")
        for rt in range(2):
            t = TM + 8 * rt
            a(f"v_permlane32_swap_b32 v{t+1}, v{t+3}")
        a("s_nop 1")
        for rt in range(2):
            t = TM + 8 * rt
            a(f"v_add_f32 v{t+1}, v{t+1}, v{t+3}")
            a(f"v_mov_b32 v{t+3}, v{t+1}")
        a("s_nop 1")
        for rt in range(2):
            t = TM + 8 * rt
            a(f"v_permlane16_swap_b32 v{t+1}, v{t+3}")
        a("s_nop 1")
        for rt in range(2):
            t = TM + 8 * rt
            a(f"v_add_f32 v{t+1}, v{t+1}, v{t+3}")
            a(f"v_rcp_f32 v{t+1}, v{t+1}")
        a("s_nop 0")
        for rt in range(2):
            t = TM + 8 * rt; pf = PF + 4 * rt
            a(f"v_mul_f32 v{t}, v{t}, v{t+1}")
            a(f"v_mul_f32 v{t+2}, v{t+2}, v{t+1}")
            a(f"v_cvt_pk_bf16_f32 v{t}, v{t}, v{t}")
            a(f"v_cvt_pk_bf16_f32 v{t+2}, v{t+2}, v{t+2}")
            a(f"v_and_b32 v{pf}, v{t}, v181")
            a(f"v_and_b32 v{pf+1}, v{t+2}, v183")
            a(f"v_and_b32 v{pf+2}, v{t}, v180")
            a(f"v_and_b32 v{pf+3}, v{t+2}, v182")
        a("s_waitcnt lgkmcnt(0)")
        a("s_nop 0")
        for rt in range(2):
            pf = PF + 4 * rt
            a(f"v_mfma_f32_16x16x32_bf16 {vr(OM+4*rt,4)}, {vr(VM+2*rt,4)}, {vr(pf,4)}, 0")
            a(f"v_mfma_f32_16x16x32_bf16 {vr(OT+4*rt,4)}, {vr(VT+2*rt,4)}, {vr(pf,4)}, {vr(OT+4*rt,4)}")
        a("s_nop 7")
        for rt in range(2):
            o = OM + 4 * rt; t = TM + 8 * rt + 4
            a(f"v_cvt_pk_bf16_f32 v{t}, v{o}, v{o+1}")
            a(f"v_cvt_pk_bf16_f32 v{t+1}, v{o+2}, v{o+3}")
            a(f"buffer_store_dwordx2 {vr(t,2)}, v{196+h}, s[32:35], s60 offen offset:{rt*1024}")
    a("s_nop 7")
    for rt in range(2):
        o = OT + 4 * rt; t = TM + 8 * rt + 6
        a(f"v_cvt_pk_bf16_f32 v{t}, v{o}, v{o+1}")
        a(f"v_cvt_pk_bf16_f32 v{t+1}, v{o+2}, v{o+3}")
        a(f"buffer_store_dwordx2 {vr(t,2)}, v203, s[32:35], s60 offen offset:{rt*1024}")

if __name__ == "__main__":
    import sys
    opt = sys.argv[2] if len(sys.argv) > 2 else ""
    a = Asm()
    info = gen_k1(a, "k1_kernel", R=(3 if "R3" in opt else 4), stamps=True, rot=("norot" not in opt), abl=opt)
    hdr = f"; @launch kernel=k1_kernel grid=(256,1,1) block=(256,1,1) lds={info['lds']}\n"
    hdr += '.amdgcn_target "amdgcn-amd-amdhsa--gfx950"\n.text\n'
    txt = hdr + a.text() + '.section .rodata,"a"\n.p2align 6\n' + descriptor("k1_kernel", info['nvgpr'], info['nsgpr'], info['accum'])
    open(sys.argv[1], "w").write(txt)
```

```python
from asmlib import *

WS_A3 = 0
A3_BYTES = 32 * 74 * 4096
WS_W3 = 10 << 20
W3_BYTES = 8 * 74 * 5120
WS_G = 16 << 20
NKS = 74

def gen_k3(a0, name, D=6, stamps=False, abl="", rot=0, xmap=0):
    class Filt:
        def __call__(self, ln):
            if "noA" in abl and "s[12:15], s31" in ln: ln = ln.replace("s31 offen", "s38 offen")
            if "noB" in abl and "s[16:19], s32" in ln: ln = ln.replace("s32 offen", "s38 offen")
            if "noM" in abl and ln.startswith("v_mfma"): return
            a0(ln)
        def label(self, n): a0.label(n)
        L = a0.L
    a = Filt()
    kernel_header(a, name)
    if abl: a("s_mov_b32 s38, 0x7f000000")
    ACC = 16
    def acc(rt, t): return ACC + (rt * 5 + t) * 4
    def afrag(slot, rt): return slot * 36 + rt * 4
    def bfrag(slot, t): return slot * 36 + 16 + t * 4
    WAVE_LDS = 20480
    a("s_cmp_ge_u32 s2, 256")
    a("s_cbranch_scc1 K3_done")
    if stamps: a("s_memtime s[40:41]")
    a("s_load_dwordx2 s[8:9], s[0:1], 64")
    a("s_load_dwordx2 s[10:11], s[0:1], 80")
    a("v_lshrrev_b32 v8, 6, v0")
    a("v_and_b32 v9, 63, v0")
    a("v_readfirstlane_b32 s28, v8")
    a("v_lshlrev_b32 v1, 4, v9")
    a("v_add_u32 v2, 4096, v1")
    a("s_and_b32 s3, s2, 7")
    a("s_lshr_b32 s29, s2, 3")
    if xmap == 0:
        a("s_lshr_b32 s30, s3, 1")
        a("s_lshl_b32 s30, s30, 3")
        a("s_lshr_b32 s31, s29, 2")
        a("s_and_b32 s29, s29, 3")
        a("s_lshl_b32 s39, s29, 1")
        a("s_add_u32 s39, s39, s31")
        a("s_and_b32 s39, s39, 7")
        a("s_add_u32 s31, s31, s30")
        a("s_and_b32 s30, s3, 1")
        a("s_lshl_b32 s30, s30, 2")
        a("s_add_u32 s30, s30, s29")
        a("s_mov_b32 s29, s31")
    else:
        a("s_lshr_b32 s31, s29, 3")
        a("s_and_b32 s30, s29, 7")
        a("s_lshl_b32 s39, s31, 1")
        a("s_add_u32 s39, s39, s30")
        a("s_and_b32 s39, s39, 7")
        a("s_lshl_b32 s29, s3, 2")
        a("s_add_u32 s29, s29, s31")
    a("s_mul_i32 s34, s28, 18")
    a("s_add_u32 s34, s34, 2")
    a("s_cmp_eq_u32 s28, 0")
    a("s_cselect_b32 s34, 0, s34")
    a("s_cselect_b32 s35, 20, 18")
    if rot == 9:
        a("s_mul_i32 s39, s39, s35")
        a("s_lshr_b32 s39, s39, 3")
    elif rot:
        a(f"s_mul_i32 s39, s39, {rot}")
        a("s_lshr_b32 s39, s39, 1")
    else:
        a("s_mov_b32 s39, 0")
    a("s_lshl_b32 s31, s39, 12")
    a("s_mul_i32 s32, s39, 5120")
    a("s_lshl_b32 s14, s35, 12")
    a("s_mul_i32 s18, s35, 5120")
    a("s_mul_i32 s37, s29, 74")
    a("s_add_u32 s37, s37, s34")
    a("s_lshl_b32 s37, s37, 12")
    a("s_mul_i32 s36, s30, 74")
    a("s_add_u32 s36, s36, s34")
    a("s_mul_i32 s36, s36, 5120")
    a(f"s_add_u32 s36, s36, {WS_W3}")
    a("s_mov_b32 s15, 0x20000")
    a("s_mov_b32 s19, 0x20000")
    a(f"s_mul_i32 s33, s28, {WAVE_LDS}")
    a("s_waitcnt lgkmcnt(0)")
    a("s_add_u32 s16, s10, s36")
    a("s_addc_u32 s17, s11, 0")
    a("s_add_u32 s12, s10, s37")
    a("s_addc_u32 s13, s11, 0")
    def adv():
        a("s_add_u32 s31, s31, 4096")
        a("s_add_u32 s32, s32, 5120")
        if rot:
            a("s_cmp_eq_u32 s31, s14")
            a("s_cselect_b32 s31, 0, s31")
            a("s_cselect_b32 s32, 0, s32")
    def loadB(slot, t):
        if t < 4: return f"buffer_load_dwordx4 {ar(bfrag(slot, t), 4)}, v1, s[16:19], s32 offen offset:{t*1024}"
        return f"buffer_load_dwordx4 {ar(bfrag(slot, t), 4)}, v2, s[16:19], s32 offen"
    def loadA(slot, rt):
        return f"buffer_load_dwordx4 {ar(afrag(slot, rt), 4)}, v1, s[12:15], s31 offen offset:{rt*1024}"
    def issue(slot):
        for t in range(5): a(loadB(slot, t))
        for rt in range(4): a(loadA(slot, rt))
        adv()
    def common_setup():
        a(f"s_add_u32 s24, s10, {WS_G}")
        a("s_addc_u32 s25, s11, 0")
        a("s_mov_b32 s26, 8192")
        a("s_mov_b32 s27, 0x20000")
        a("s_mov_b32 s20, s8")
        a("s_mov_b32 s21, s9")
        a(f"s_mov_b32 s22, {2048*640*2}")
        a("s_mov_b32 s23, 0x20000")
        for r in range(80):
            a(f"v_mov_b32 v{ACC+r}, 0")
    e0 = (-20) % D; e1 = (-18) % D
    it0 = (20 + e0) // D - 1; it1 = (18 + e1) // D - 1
    def prologue(e, iters):
        for s in range(D):
            issue((e + s) % D)
        a(f"s_mov_b32 s34, {iters}")
        a(f"s_mov_b32 s35, {e}")
        a(f"s_branch K3_common")
    a("s_cmp_eq_u32 s28, 0")
    a("s_cbranch_scc0 K3_pro1")
    prologue(e0, it0)
    a.label("K3_pro1")
    prologue(e1, it1)
    a.label("K3_common")
    common_setup()
    if e0 != 0:
        a(f"s_cmp_eq_u32 s35, {e0}")
        a(f"s_cbranch_scc1 K3_step{e0}")
    if e1 != 0 and e1 != e0:
        a(f"s_cmp_eq_u32 s35, {e1}")
        a(f"s_cbranch_scc1 K3_step{e1}")
    def step(j, loads, wait_n):
        a(f"s_waitcnt vmcnt({wait_n})")
        for t in range(5):
            for rt in range(4):
                a(f"v_mfma_f32_16x16x32_bf16 {vr(acc(rt,t),4)}, {ar(bfrag(j,t),4)}, {ar(afrag(j,rt),4)}, {vr(acc(rt,t),4)}")
            if loads: a(loadB(j, t))
        if loads:
            for rt in range(4): a(loadA(j, rt))
            adv()
    for j in range(D):
        a.label(f"K3_step{j}")
        step(j, True, 9 * (D - 1))
    a("s_sub_u32 s34, s34, 1")
    a("s_cmp_lg_u32 s34, 0")
    a("s_cbranch_scc1 K3_step0")
    for j in range(D):
        step(j, False, 9 * (D - 1 - j))
    a("s_lshl_b32 s36, s29, 6")
    a("s_lshl_b32 s37, s28, 4")
    a("s_add_u32 s36, s36, s37")
    a("v_and_b32 v10, 15, v9")
    a("v_add_u32 v10, s36, v10")
    a("v_lshlrev_b32 v11, 2, v10")
    a("buffer_load_dword v12, v11, s[24:27], 0 offen")
    a("v_add_u32 v13, s33, v1")
    a("s_nop 7")
    for rt in range(4):
        for t in range(5):
            a(f"ds_write_b128 v13, {vr(acc(rt,t),4)} offset:{(rt*5+t)*1024}")
    a("s_mul_i32 s37, s28, 5120")
    a("v_add_u32 v13, s37, v1")
    a("s_waitcnt lgkmcnt(0)")
    a("s_barrier")
    for src in range(4):
        for t in range(5):
            off = src * WAVE_LDS + t * 1024
            if src * WAVE_LDS + 4096 < 65536:
                a(f"ds_read_b128 {vr(acc(src,t),4)}, v13 offset:{off}")
            else:
                if t == 0: a(f"v_add_u32 v14, {src*WAVE_LDS}, v13")
                a(f"ds_read_b128 {vr(acc(src,t),4)}, v14 offset:{t*1024}")
    a("v_mul_u32_u24 v10, 0x500, v10")
    a("v_lshrrev_b32 v11, 4, v9")
    a("v_lshl_add_u32 v10, v11, 3, v10")
    a("s_mul_i32 s37, s30, 160")
    a("v_add_u32 v10, s37, v10")
    a("s_waitcnt vmcnt(0) lgkmcnt(0)")
    for t in range(5):
        for e in range(4):
            A_, B1, B2, B3 = acc(0,t)+e, acc(1,t)+e, acc(2,t)+e, acc(3,t)+e
            a(f"v_add_f32 v{B1}, v{B1}, v{B2}")
            a(f"v_add_f32 v{B1}, v{B1}, v{B3}")
            a(f"v_sub_f32 v{A_}, v{A_}, v{B1}")
            a(f"v_fmac_f32 v{B1}, v12, v{A_}")
        b = acc(1,t)
        a(f"v_cvt_pk_bf16_f32 v{acc(0,t)}, v{b}, v{b+1}")
        a(f"v_cvt_pk_bf16_f32 v{acc(0,t)+1}, v{b+2}, v{b+3}")
        a(f"buffer_store_dwordx2 {vr(acc(0,t),2)}, v10, s[20:23], 0 offen offset:{32*t}")
    if stamps:
        a("s_memtime s[42:43]")
        a("s_waitcnt lgkmcnt(0)")
        a("s_sub_u32 s42, s42, s40")
        a(f"s_add_u32 s24, s10, {32<<20}")
        a("s_addc_u32 s25, s11, 0")
        a("s_mov_b32 s26, 0x100000")
        a("s_lshl_b32 s36, s2, 2")
        a("s_add_u32 s36, s36, s28")
        a("s_lshl_b32 s36, s36, 2")
        a("v_mov_b32 v10, s36")
        a("v_mov_b32 v11, s42")
        a("buffer_store_dword v11, v10, s[24:27], 0 offen")
    a.label("K3_done")
    a("s_endpgm")
    lds = 4 * WAVE_LDS
    nagpr = 36 * D
    return dict(lds=lds, nvgpr=96 + nagpr, accum=96, nsgpr=48)

if __name__ == "__main__":
    import sys
    D = int(sys.argv[2]) if len(sys.argv) > 2 else 4
    opt = sys.argv[3] if len(sys.argv) > 3 else ""
    a = Asm()
    info = gen_k3(a, "k3_kernel", D=D, stamps=True, abl=opt, rot=(int(opt[opt.index("R")+1]) if "R" in opt else 0), xmap=(1 if "x1" in opt else 0))
    hdr = f"; @launch kernel=k3_kernel grid=(256,1,1) block=(256,1,1) lds={info['lds']}\n"
    hdr += '.amdgcn_target "amdgcn-amd-amdhsa--gfx950"\n.text\n'
    txt = hdr + a.text() + '.section .rodata,"a"\n.p2align 6\n' + descriptor("k3_kernel", info['nvgpr'], info['nsgpr'], info['accum'])
    open(sys.argv[1], "w").write(txt)
```

```python
import sys
from asmlib import *
import k1, k3
def build(out, k1opt=None, k3opt=None, stamps=False):
    k1opt = k1opt or {}; k3opt = k3opt or {}
    a = Asm()
    i1 = k1.gen_k1(a, "gmix_a_kernel", stamps=stamps, **k1opt)
    i3 = k3.gen_k3(a, "gmix_b_kernel", stamps=(True if stamps in ('pro', 'pro2') else stamps), **k3opt)
    ref = open("gated_mix__sliding_local_dilated__dense_activation_mish__prompt.s.ref").read().split("\n")
    hdr = [l for l in ref if l.startswith(";") and "@launch" not in l and "Override" not in l and "grid=ceil" not in l]
    hdr = hdr[:12]
    hdr.append(f"; @launch kernel=gmix_a_kernel grid=(256,1,1) block=({i1.get('block',256)},1,1) lds={i1['lds']}")
    hdr.append(f"; @launch kernel=gmix_b_kernel grid=(256,1,1) block=({i3.get('block',256)},1,1) lds={i3['lds']}")
    txt = "\n".join(hdr) + '\n.amdgcn_target "amdgcn-amd-amdhsa--gfx950"\n.text\n' + a.text()
    txt += '.section .rodata,"a"\n.p2align 6\n'
    txt += descriptor("gmix_a_kernel", i1['nvgpr'], i1['nsgpr'], i1['accum'])
    txt += '.p2align 6\n' + descriptor("gmix_b_kernel", i3['nvgpr'], i3['nsgpr'], i3['accum'])
    open(out, "w").write(txt)
if __name__ == "__main__":
    build(sys.argv[1] if len(sys.argv) > 1 else "gated_mix__sliding_local_dilated__dense_activation_mish__prompt.s",
          k1opt=dict(rot=6), k3opt=dict(D=4, rot=0))
```

```python
from asmlib import *
from k3 import WS_A3, WS_W3, WS_G

ROWB = 480
KST = 32 * ROWB
BST = 2 * KST
AST = 144 * 128
STG = BST + AST
SK = 336
QX = 49152
R = 3
RPK = R * STG

LOG2E = 1.4426950408889634
import struct
def f32(x): return "0x%08x" % struct.unpack("<I", struct.pack("<f", x))[0]

V_DMA = 1
V_LANE = 9
V_TR = 10
V_AR = 16
V_I = 20; V_Q = 21
ACC = 32
NV = 160
def bfrag(buf, t): return buf * 32 + t * 4
def afrag(buf, rt): return 64 + buf * 12 + rt * 4

SCHED = {}
def gen_k1(a0, name, stamps=False, rot=True, abl="", prio=False, sched=None):
    global SCHED
    SCHED = sched or {}
    class Filt:
        def __call__(self, ln):
            if "noB" in abl and "s[28:31], s44" in ln: ln = ln.replace("s44 offen", "s98 offen")
            if "noM" in abl and ln.startswith("v_mfma") and "], a[" in ln and ln.count("a[") == 2: return
            if "noT" in abl and (ln.startswith("ds_read_b64_tr_b16 a") or ln.startswith("ds_read_b128 a")): return
            if "noD" in abl and ln.endswith(" lds") and ("s40 offen" in ln or "s44 offen" in ln): return
            if "dropA" in abl and ln.endswith(" lds") and "s40 offen" in ln: return
            if "dropB" in abl and ln.endswith(" lds") and "s44 offen" in ln: return
            a0(ln)
        def label(self, n): a0.label(n)
        L = a0.L
    a = Filt()
    kernel_header(a, name)
    if abl: a("s_mov_b32 s98, 0x7f000000")
    a("s_cmp_ge_u32 s2, 256")
    a("s_cbranch_scc1 K1_done")
    if stamps: a("s_memtime s[90:91]")
    a("s_load_dwordx4 s[4:7], s[0:1], 0")
    a("s_load_dwordx2 s[8:9], s[0:1], 16")
    a("s_load_dwordx4 s[12:15], s[0:1], 32")
    a("s_load_dwordx4 s[16:19], s[0:1], 48")
    a("s_load_dwordx2 s[10:11], s[0:1], 80")
    a("v_lshrrev_b32 v28, 6, v0")
    a(f"v_and_b32 v{V_LANE}, 63, v0")
    a("v_readfirstlane_b32 s41, v28")
    a("s_and_b32 s3, s2, 7")
    a("s_lshr_b32 s21, s2, 3")
    a("s_lshr_b32 s22, s3, 1")
    a("s_lshl_b32 s22, s22, 2")
    a("s_lshr_b32 s23, s21, 3")
    a("s_add_u32 s22, s22, s23")
    a("s_and_b32 s21, s21, 7")
    a("s_mul_i32 s36, s23, 5")
    a("s_lshr_b32 s36, s36, 1")
    a("s_add_u32 s36, s36, s21")
    a("s_cmp_ge_u32 s36, 10")
    a("s_cselect_b32 s37, 10, 0")
    a("s_sub_u32 s36, s36, s37")
    if not rot: a("s_mov_b32 s36, 0")
    a("s_and_b32 s23, s3, 1")
    a("s_lshl_b32 s23, s23, 2")
    a("s_and_b32 s37, s21, 3")
    a("s_add_u32 s23, s23, s37")
    a("s_lshr_b32 s21, s21, 2")
    a("s_and_b32 s20, s41, 3")
    a("s_lshr_b32 s47, s41, 2")
    a(f"v_and_b32 v{V_I}, 15, v{V_LANE}")
    a(f"v_lshrrev_b32 v{V_Q}, 4, v{V_LANE}")
    a("s_mul_i32 s39, s41, 6144")
    a("s_mov_b32 s27, 0x20000")
    a("s_mov_b32 s31, 0x20000")
    a(f"s_mov_b32 s26, {2048*1280}")
    a("s_mov_b32 s45, s36")
    a("s_mov_b32 s46, 0")
    a("s_mov_b32 s49, 0")
    a("s_mov_b64 s[64:65], -1")
    if prio:
        a("s_cmp_eq_u32 s47, 0")
        a("s_cbranch_scc1 K1_noprio")
        a("s_setprio 1")
        a.label("K1_noprio")
    a("s_cmp_eq_u32 s21, 1")
    a("s_cbranch_scc1 K1_ffn")
    variant(a, "Q", stamps, abl)
    a.label("K1_ffn")
    variant(a, "F", stamps, abl)
    a.label("K1_done")
    a("s_endpgm")
    lds = RPK + 12288
    return dict(lds=lds, nvgpr=NV + 88, accum=NV, nsgpr=100, block=512)

def emit(a, groups):
    for g in groups:
        for i in g: a(i)

def variant(a, kind, stamps, abl):
    Q = kind == "Q"
    pitch = 3840 if Q else 3456
    P = "K1" + kind
    nL = 6
    def half(hf):
        L = []
        for i in range(3):
            g = []
            if i == 0:
                g += ["s_mov_b64 exec, s[64:65]", f"s_add_u32 m0, s49, s{39 if hf == 0 else 48}", "s_nop 0"]
            else:
                g += ["s_mov_b64 exec, s[64:65]"]
            g.append(f"buffer_load_dwordx4 v{V_DMA+3*hf+i}, s[28:31], s44 offen offset:{i*1024} lds")
            g.append("s_mov_b64 exec, -1")
            L.append(g)
        return L
    def adv():
        return [["s_add_u32 s45, s45, 1", "s_add_u32 s44, s44, s50", "s_cmp_eq_u32 s45, 10", "s_cselect_b32 s45, 0, s45", "s_cselect_b32 s44, 0, s44"],
                ["s_add_u32 s46, s46, 1", "s_cmp_ge_u32 s46, 10", "s_cselect_b64 s[64:65], 1, s[64:65]"],
                [f"s_add_u32 s49, s49, {STG}", f"s_cmp_eq_u32 s49, {R*STG}", "s_cselect_b32 s49, 0, s49"]]
    def load_list(part=None):
        if part == 0: return half(0)
        if part == 1: return half(1) + adv()
        return half(0) + half(1) + adv()
    a("s_add_u32 s48, s39, 3072")
    if Q:
        a("s_mul_i32 s37, s23, 160")
    else:
        a("s_mul_i32 s42, s23, 7")
        a("s_cmp_eq_u32 s23, 7")
        a("s_cselect_b32 s42, 48, s42")
        a("s_cmp_lt_u32 s23, 6")
        a("s_cselect_b32 s43, 28, 24")
        a("s_lshl_b32 s37, s42, 6")
    a("s_cmp_ge_u32 s41, 5")
    a(f"s_cbranch_scc1 {P}_aload")
    a(f"s_mov_b32 s50, {64*pitch}")
    a(f"s_mov_b32 s30, {640*pitch}")
    a("s_mul_i32 s38, s41, 384")
    if not Q: a("v_mov_b32 v40, 0x7f000000")
    a(f"v_add_u32 v36, s38, v{V_LANE}")
    for i in range(6):
        a(f"v_add_u32 v32, {i*64}, v36")
        a("v_mul_u32_u24 v33, 0x889, v32")
        a("v_lshrrev_b32 v33, 16, v33")
        a("v_mul_u32_u24 v34, 30, v33")
        a("v_sub_u32 v32, v32, v34")
        a("v_and_b32 v34, 0x33, v33")
        a("v_and_b32 v35, 4, v33")
        a("v_lshl_or_b32 v34, v35, 1, v34")
        a("v_and_b32 v35, 8, v33")
        a("v_lshrrev_b32 v35, 1, v35")
        a("v_or_b32 v33, v34, v35")
        a(f"v_mul_u32_u24 v33, {pitch}, v33")
        a("v_lshl_add_u32 v33, v32, 4, v33")
        if Q:
            a("v_mul_u32_u24 v34, 0x667, v32")
            a("v_lshrrev_b32 v34, 14, v34")
            a("v_mul_u32_u24 v34, 1120, v34")
            a("v_add3_u32 v33, v33, v34, s37")
            a(f"v_subrev_u32 v{V_DMA+i}, {(i%3)*1024}, v33")
        else:
            a("v_add_u32 v33, s37, v33")
            a("v_cmp_gt_u32 vcc, s43, v32")
            a(f"v_subrev_u32 v33, {(i%3)*1024}, v33")
            a("s_nop 0")
            a(f"v_cndmask_b32 v{V_DMA+i}, v40, v33, vcc")
    a("s_waitcnt lgkmcnt(0)")
    a(f"s_mov_b32 s28, s{6 if Q else 12}")
    a(f"s_mov_b32 s29, s{7 if Q else 13}")
    a(f"s_branch {P}_loads")
    a.label(f"{P}_aload")
    a("s_movk_i32 s50, 128")
    a(f"s_mov_b32 s30, {2048*1280}")
    a(f"v_lshrrev_b32 v28, 3, v{V_LANE}")
    a(f"v_and_b32 v29, 7, v{V_LANE}")
    a("v_lshrrev_b32 v30, 1, v28")
    a("v_xor_b32 v30, v29, v30")
    a("v_xor_b32 v31, 4, v30")
    a("s_sub_u32 s38, s41, 5")
    a("s_mul_i32 s38, s38, 48")
    a("s_lshl_b32 s62, s22, 7")
    a("s_add_u32 s38, s38, s62")
    a("v_add_u32 v28, s38, v28")
    a("v_mul_u32_u24 v28, 0x500, v28")
    a("v_lshl_add_u32 v30, v30, 4, v28")
    a("v_lshl_add_u32 v31, v31, 4, v28")
    a("s_cmp_eq_u32 s41, 7")
    a(f"s_cselect_b32 s62, {-144*1280}, 0")
    for i in range(6):
        a(f"v_add_u32 v{V_DMA+i}, {i*10240 - (i%3)*1024}, v{30 + (i&1)}")
        if i >= 4: a(f"v_add_u32 v{V_DMA+i}, s62, v{V_DMA+i}")
    a("s_waitcnt lgkmcnt(0)")
    a("s_mov_b32 s28, s4")
    a("s_mov_b32 s29, s5")
    a.label(f"{P}_loads")
    a("s_mul_i32 s44, s36, s50")
    a("s_mov_b32 s24, s4")
    a("s_mov_b32 s25, s5")
    emit(a, load_list())
    if not Q:
        a("s_mov_b32 s32, s14")
        a("s_mov_b32 s33, s15")
        a("s_mov_b32 s34, 3456")
        a("s_mov_b32 s35, 0x20000")
        a("s_lshl_b32 s52, s47, 8")
        a("s_lshl_b32 s53, s47, 5")
        a("s_add_u32 s53, s53, 192")
        a(f"v_lshlrev_b32 v32, 3, v{V_Q}")
        a("v_add_u32 v32, s37, v32")
        for t in range(6):
            a(f"buffer_load_dwordx2 {vr(100+2*t,2)}, v32, s[32:35], s52 offen offset:{32*t}")
        a(f"buffer_load_dwordx2 {vr(112,2)}, v32, s[32:35], s53 offen")
    emit(a, load_list()); emit(a, load_list(0))
    a(f"v_lshrrev_b32 v28, 5, v{V_LANE}")
    a("v_lshlrev_b32 v28, 4, v28")
    a(f"v_bfe_u32 v29, v{V_LANE}, 2, 3")
    a("v_add_u32 v28, v28, v29")
    a(f"v_mul_u32_u24 v28, {ROWB}, v28")
    a(f"v_and_b32 v29, 3, v{V_LANE}")
    a(f"v_lshl_add_u32 v27, v29, 3, v28")
    a(f"v_lshrrev_b32 v30, 1, v{V_I}")
    a(f"v_xor_b32 v30, v{V_Q}, v30")
    a(f"v_lshlrev_b32 v31, 7, v{V_I}")
    a("v_lshl_add_u32 v30, v30, 4, v31")
    a("v_xor_b32 v31, 64, v30")
    a("s_lshl_b32 s63, s20, 12")
    a(f"s_add_u32 s63, s63, {BST}")
    a(f"v_add_u32 v{V_AR}, s63, v30")
    a(f"v_add_u32 v{V_AR+1}, s63, v31")
    a("s_mov_b32 s51, 10")
    a(f"s_mov_b32 s57, {STG}")
    a("s_mov_b32 s58, 1")
    a(f"s_mov_b32 s59, {STG}")
    if Q:
        a(f"v_add_u32 v{V_AR+2}, {BST+16384}, v30")
        a(f"v_add_u32 v{V_AR+3}, {BST+16384}, v31")
        a("s_cmp_eq_u32 s47, 1")
        a("s_cbranch_scc1 K1Q_n1")
        body(a, "Q0", stamps, load_list, nL)
        a.label("K1Q_n1")
        body(a, "Q1", stamps, load_list, nL)
        a.label("K1Q_attn")
        attn_common(a)
    else:
        body(a, "F", stamps, load_list, nL)
    finish(a, Q, stamps)

def kv_tables(kind):
    if kind == "Q0":
        return {1: (32, -32, 0), 2: (64, 0, -64), 3: (0, 0, 0)}
    else:
        return {1: (64, 64, -64, 0, 0), 2: (128, 128, 0, -128, 0), 3: (192, 0, 0, 0, -192)}

def body(a, kind, stamps, load_list, nL):
    Q = kind != "F"
    NT = {"Q0": 8, "Q1": 7, "F": 7}[kind]
    NH = {"Q0": 1, "Q1": 2, "F": 0}[kind]
    P = "K1" + kind
    def acc(rt, t): return ACC + (rt * NT + t) * 4
    HALO = ACC + 2 * NT * 4
    NACC = 2 * NT * 4 + 4 * NH
    if kind == "F":
        a(f"v_add_u32 v{V_TR}, s52, v27")
        a(f"v_add_u32 v{V_TR+1}, s53, v27")
        ntr = 2
        def tr_addr(t): return (V_TR, 32 * t) if t < 6 else (V_TR + 1, 0)
        halo_slots = []
    else:
        tab = kv_tables(kind); nk = len(tab[1])
        for k in range(nk): a(f"s_mov_b32 s{52+k}, 0")
        for w in (1, 2, 3):
            if not any(tab[w]): continue
            a(f"s_cmp_eq_u32 s20, {w}")
            for k in range(nk):
                if tab[w][k]: a(f"s_cselect_b32 s{52+k}, {tab[w][k]}, s{52+k}")
        if kind == "Q0":
            a(f"v_mov_b32 v{V_TR}, v27")
            a("v_mul_u32_u24 v30, 40, v29")
            a(f"v_add3_u32 v{V_TR+1}, v28, v30, 32")
            for k in range(3): a(f"v_add_u32 v{V_TR+2+k}, s{52+k}, v27")
            ntr = 5
            def tr_addr(t):
                if t < 4: return V_TR, 40 * t
                if t == 4: return V_TR + 1, 0
                return V_TR + 2 + (t - 5), 160 + 32 * (t - 5)
            halo_slots = [5]
        else:
            for k in range(5): a(f"v_add_u32 v{V_TR+k}, s{52+k}, v27")
            ntr = 5
            def tr_addr(t):
                return V_TR + (0, 1, 2, 2, 3, 3, 4)[t], 160 + 96 + 32 * t
            halo_slots = [0, 1]
    bump = list(range(V_TR, V_TR + ntr)) + list(range(V_AR, V_AR + (4 if Q else 2)))
    def rd_list(buf, kk):
        L = []
        for rt in range(2):
            L.append([f"ds_read_b128 {ar(afrag(buf, rt), 4)}, v{V_AR+kk} offset:{rt*2048}"])
        if Q: L.append([f"ds_read_b128 {ar(afrag(buf, 2), 4)}, v{V_AR+2+kk}"])
        for t in range(NT):
            reg, off = tr_addr(t)
            for h in range(2):
                L.append([f"ds_read_b64_tr_b16 {ar(bfrag(buf, t) + 2*h, 2)}, v{reg} offset:{kk*KST + h*8*ROWB + off}"])
        return L
    def mfma_list(buf):
        L = []
        for t in range(NT):
            for rt in range(2):
                L.append(f"v_mfma_f32_16x16x32_bf16 {vr(acc(rt,t),4)}, {ar(bfrag(buf,t),4)}, {ar(afrag(buf,rt),4)}, {vr(acc(rt,t),4)}")
            if t in halo_slots:
                hh = halo_slots.index(t)
                L.append(f"v_mfma_f32_16x16x32_bf16 {vr(HALO+4*hh,4)}, {ar(bfrag(buf,t),4)}, {ar(afrag(buf,2),4)}, {vr(HALO+4*hh,4)}")
        return L
    if Q:
        for r in range(NACC): a(f"v_mov_b32 v{ACC+r}, 0")
        a(f"s_waitcnt vmcnt({nL + 3})")
    else:
        a(f"s_waitcnt vmcnt({nL + 3})")
        for t in range(NT):
            b = 100 + 2 * t
            for d in (acc(0, t), acc(1, t)):
                a(f"v_lshlrev_b32 v{d}, 16, v{b}")
                a(f"v_and_b32 v{d+1}, 0xffff0000, v{b}")
                a(f"v_lshlrev_b32 v{d+2}, 16, v{b+1}")
                a(f"v_and_b32 v{d+3}, 0xffff0000, v{b+1}")
    a("s_barrier")
    emit(a, rd_list(0, 0))
    if stamps: a("s_memtime s[94:95]")
    a.label(f"{P}_loop")
    def interleave(mf, groups, rate, delay=0):
        gi = 0; credit = 0.0
        for mi, m in enumerate(mf):
            a(m)
            if mi < delay: continue
            credit += rate
            while credit >= 1.0 and gi < len(groups):
                for i in groups[gi]: a(i)
                gi += 1; credit -= 1.0
        while gi < len(groups):
            for i in groups[gi]: a(i)
            gi += 1
    a("s_waitcnt lgkmcnt(0)")
    bumps = [[f"v_add_u32 v{r}, s57, v{r}"] for r in bump]
    bumps.append(["s_add_u32 s58, s58, 1", f"s_cmp_eq_u32 s58, {R}", "s_cselect_b32 s58, 0, s58", f"s_cselect_b32 s57, {-(R-1)*STG}, s59"])
    def mix(rd, ld, extra):
        out = []; n = len(rd); k = len(ld)
        pos = [int((j + 0.5) * (n + len(extra)) / k) for j in range(k)] if k else []
        allg = rd + extra
        for idx, g in enumerate(allg):
            out.append(g)
            while pos and pos[0] == idx:
                out.append(ld.pop(0)); pos.pop(0)
        return out + ld
    l1 = load_list(1)
    rate, delay = SCHED.get(kind, (2.0, 0))
    interleave(mfma_list(0), mix(rd_list(1, 1), l1[:3], bumps + l1[3:]), rate, delay)
    a(f"s_waitcnt vmcnt({nL}) lgkmcnt(0)")
    a("s_barrier")
    interleave(mfma_list(1), mix(rd_list(0, 0), load_list(0), [[] for _ in range(10)]), rate, delay)
    a("s_sub_u32 s51, s51, 1")
    a("s_cmp_lg_u32 s51, 0")
    a(f"s_cbranch_scc1 {P}_loop")
    if stamps: a("s_memtime s[96:97]")
    a(f"s_add_u32 s32, s10, {WS_A3}")
    a("s_addc_u32 s33, s11, 0")
    a(f"s_mov_b32 s34, {32*74*4096}")
    a("s_mov_b32 s35, 0x20000")
    a("s_lshl_b32 s60, s22, 3")
    a("s_lshl_b32 s61, s20, 1")
    a("s_add_u32 s60, s60, s61")
    a("s_lshr_b32 s61, s60, 2")
    a("s_mul_i32 s61, s61, 296")
    a("s_and_b32 s60, s60, 3")
    a("s_add_u32 s60, s60, s61")
    a("s_lshl_b32 s60, s60, 10")
    if kind == "F":
        ffn_epilogue(a, acc)
    else:
        attn_head(a, kind, acc, HALO, NT, halo_slots)

QF = 100
def attn_head(a, kind, acc, HALO, NT, halo_slots):
    I, Qr = V_I, V_Q
    first = 5 if kind == "Q0" else 0
    coff = 0 if kind == "Q0" else 96
    nk = 3 if kind == "Q0" else 5
    if kind == "Q1": repack_issue(a)
    a("s_lshl_b32 s62, s20, 5")
    a("s_add_u32 s62, s62, 16")
    a(f"v_add_u32 v120, s62, v{I}")
    a(f"v_mul_u32_u24 v120, {SK}, v120")
    a(f"v_lshl_add_u32 v120, v{Qr}, 3, v120")
    a(f"v_mul_u32_u24 v126, {SK}, v{I}")
    a(f"v_lshl_add_u32 v126, v{Qr}, 3, v126")
    for k in range(nk):
        a(f"v_add_u32 v{121+k}, s{52+k}, v120")
    for hh in range(len(halo_slots)):
        a(f"v_add_u32 v{127+hh}, s{52+hh}, v126")
    def wreg(s): return 121 + (s if kind == "Q0" else (0, 1, 2, 2, 3, 3, 4)[s])
    for rt in range(2):
        for t in range(first, NT):
            r = acc(rt, t)
            a(f"v_cvt_pk_bf16_f32 v{r}, v{r}, v{r+1}")
            a(f"v_cvt_pk_bf16_f32 v{r+1}, v{r+2}, v{r+3}")
    for hh in range(len(halo_slots)):
        r = HALO + 4 * hh
        a(f"v_cvt_pk_bf16_f32 v{r}, v{r}, v{r+1}")
        a(f"v_cvt_pk_bf16_f32 v{r+1}, v{r+2}, v{r+3}")
    a(f"v_lshlrev_b32 v130, 4, v{V_LANE}")
    a("s_lshl_b32 s62, s20, 12")
    a(f"s_add_u32 s62, s62, {QX}")
    a("v_add_u32 v130, s62, v130")
    if kind == "Q0":
        for rt in range(2):
            tb = acc(rt, 4)
            a(f"v_cvt_pk_bf16_f32 v{tb}, v{tb}, v{tb+1}")
            a(f"v_cvt_pk_bf16_f32 v{tb+1}, v{tb+2}, v{tb+3}")
        for h in range(4):
            a(f"v_cmp_eq_u32 s[84:85], {h}, v{Qr}")
            for rt in range(2):
                r = acc(rt, h); tb = acc(rt, 4)
                d = QF + (h * 2 + rt) * 4 if h < 2 else r
                a(f"v_cvt_pk_bf16_f32 v{d}, v{r}, v{r+1}")
                a(f"v_cvt_pk_bf16_f32 v{d+1}, v{r+2}, v{r+3}")
                a(f"v_cndmask_b32 v{d+2}, 0, v{tb}, s[84:85]")
                a(f"v_cndmask_b32 v{d+3}, 0, v{tb+1}, s[84:85]")
        a("v_mov_b32 v132, 0")
        a("v_mov_b32 v133, 0")
        a(f"v_and_b32 v131, 1, v{Qr}")
        a("v_lshlrev_b32 v131, 3, v131")
        a(f"v_lshlrev_b32 v134, 3, v{Qr}")
        a("v_sub_u32 v131, v131, v134")
        a("v_add_u32 v134, v120, v131")
        a("v_add_u32 v135, v126, v131")
    a(f"s_waitcnt vmcnt({3 if kind == 'Q1' else 0}) lgkmcnt(0)")
    a("s_barrier")
    for rt in range(2):
        for t in range(first, NT):
            s = t - first
            a(f"ds_write_b64 v{wreg(s)}, {vr(acc(rt,t),2)} offset:{rt*16*SK + coff + 32*s}")
    for hh in range(len(halo_slots)):
        a(f"ds_write_b64 v{127+hh}, {vr(HALO+4*hh,2)} offset:{coff + 32*hh}")
    if kind == "Q0":
        a(f"ds_write_b64 v134, v[132:133] offset:320")
        a(f"ds_write_b64 v134, v[132:133] offset:{16*SK+320}")
        a(f"ds_write_b64 v135, v[132:133] offset:320")
        for h in (2, 3):
            for rt in range(2):
                a(f"ds_write_b128 v130, {vr(acc(rt,h),4)} offset:{((h-2)*2+rt)*1024}")
        a("s_branch K1Q_attn")

def attn_common(a):
    I, Qr = V_I, V_Q
    a(f"v_and_b32 v32, 1, v{I}")
    a(f"v_lshl_add_u32 v33, v{Qr}, 2, v32")
    a("v_cmp_eq_u32 s[84:85], 1, v32")
    a(f"v_cmp_le_u32 s[86:87], v33, v{I}")
    a("v_add_u32 v33, 2, v33")
    a(f"v_cmp_le_u32 s[88:89], v33, v{I}")
    a("v_mov_b32 v140, 0xffff")
    a("v_mov_b32 v141, 0xffff0000")
    a("v_cndmask_b32 v140, v140, v141, s[84:85]")
    a("v_cndmask_b32 v142, 0, v140, s[86:87]")
    a("v_cndmask_b32 v143, v140, 0, s[86:87]")
    a("v_cndmask_b32 v144, 0, v140, s[88:89]")
    a("v_cndmask_b32 v145, v140, 0, s[88:89]")
    a("s_or_b32 s62, s22, s20")
    a("s_cmp_eq_u32 s62, 0")
    a(f"s_cselect_b32 s62, {f32(-1e30)}, 0")
    a("v_mov_b32 v140, s62")
    a("v_cndmask_b32 v146, v140, 0, s[86:87]")
    a("v_cndmask_b32 v147, v140, 0, s[88:89]")
    a("s_lshl_b32 s62, s20, 5")
    a("s_mul_i32 s63, s47, 80")
    a(f"v_add_u32 v148, s62, v{I}")
    a(f"v_mul_u32_u24 v148, {SK}, v148")
    a("v_add_u32 v148, s63, v148")
    a("v_add_u32 v149, 32, v148")
    a(f"v_lshl_add_u32 v148, v{Qr}, 3, v148")
    a(f"v_lshrrev_b32 v150, 2, v{V_LANE}")
    a("v_add_u32 v150, s62, v150")
    a(f"v_mul_u32_u24 v150, {SK}, v150")
    a(f"v_and_b32 v151, 3, v{V_LANE}")
    a("s_lshl_b32 s66, s47, 1")
    for u in range(2):
        a(f"s_add_u32 s67, s66, {u}")
        a("v_cmp_eq_u32 vcc, s67, v151")
        a(f"s_add_u32 s67, s63, {160+40*u+32}")
        a("v_mov_b32 v140, s67")
        a("v_mov_b32 v141, 320")
        a("v_cndmask_b32 v140, v141, v140, vcc")
        a(f"v_add_u32 v{152+u}, v150, v140")
    a("v_lshl_add_u32 v150, v151, 3, v150")
    a("v_add_u32 v150, s63, v150")
    a("s_mul_i32 s62, s23, 20")
    def out_addr(dst, g):
        a(f"v_lshrrev_b32 v140, 3, v{g}")
        a("v_lshlrev_b32 v140, 12, v140")
        a(f"v_and_b32 v141, 3, v{g}")
        a("v_lshl_add_u32 v140, v141, 8, v140")
        a(f"v_bfe_u32 v141, v{g}, 2, 1")
        a("v_lshl_add_u32 v140, v141, 3, v140")
        a(f"v_lshl_add_u32 v{dst}, v{I}, 4, v140")
    a("s_mul_i32 s63, s47, 10")
    a("s_add_u32 s63, s63, s62")
    for u in range(2):
        a(f"s_add_u32 s67, s63, {5*u}")
        a(f"v_add_u32 v151, s67, v{Qr}")
        out_addr(154 + u, 151)
    a(f"v_mul_u32_u24 v151, 5, v{Qr}")
    a("s_add_u32 s63, s62, 4")
    a("v_add_u32 v151, s63, v151")
    out_addr(156, 151)
    a(f"s_mov_b32 s80, {f32(LOG2E * 20 ** -0.5)}")
    a("s_waitcnt vmcnt(0) lgkmcnt(0)")
    a("s_barrier")
    def KF(u): return 0 + 24 * u
    def VM(u): return 12 + 24 * u
    def VT(u): return 18 + 24 * u
    def SS(c): return 32 + 8 * c
    def OT(rt): return 64 + 4 * rt
    def TM(c): return 72 + 4 * c
    def PF(c): return 116 + 4 * c
    def PK(c): return 88 + 2 * c
    a("s_cmp_eq_u32 s47, 0")
    a("s_cbranch_scc1 K1Q_haveq")
    for k in range(4):
        a(f"ds_read_b128 {vr(QF+4*k,4)}, v130 offset:{k*1024}")
    a.label("K1Q_haveq")
    for u in range(2):
        for j in range(3):
            a(f"ds_read_b64 {ar(KF(u)+4*j,2)}, v148 offset:{j*16*SK + 40*u}")
            a(f"ds_read_b64 {ar(KF(u)+4*j+2,2)}, v149 offset:{j*16*SK + 40*u}")
    for rt in range(2):
        for e in range(4): a(f"v_mov_b32 v{OT(rt)+e}, 0")
    chains = [(rt, 2*u + rt, u) for u in range(2) for rt in range(2)]
    a("s_waitcnt lgkmcnt(0)")
    for (rt, c, u) in chains:
        a(f"v_mfma_f32_16x16x32_bf16 {vr(SS(c),4)}, {ar(KF(u)+4*rt,4)}, {vr(QF+4*c,4)}, 0")
        a(f"v_mfma_f32_16x16x32_bf16 {vr(SS(c)+4,4)}, {ar(KF(u)+4*rt+4,4)}, {vr(QF+4*c,4)}, 0")
    for u in range(2):
        for j in range(3):
            a(f"ds_read_b64_tr_b16 {ar(VM(u)+2*j,2)}, v150 offset:{j*16*SK + 160 + 40*u}")
            a(f"ds_read_b64_tr_b16 {ar(VT(u)+2*j,2)}, v{152+u} offset:{j*16*SK}")
    def each(fn):
        for ch in chains: fn(*ch)
    def s1(rt, c, u):
        Sp = SS(c); Sc = Sp + 4; t = TM(c)
        a(f"v_cndmask_b32 v{t}, v{Sc}, v{Sc+1}, s[84:85]")
        a(f"v_cndmask_b32 v{t+1}, v{Sp}, v{Sp+1}, s[84:85]")
        a(f"v_cndmask_b32 v{t+2}, v{Sc+2}, v{Sc+3}, s[84:85]")
        a(f"v_cndmask_b32 v{t+3}, v{Sp+2}, v{Sp+3}, s[84:85]")
        a(f"v_cndmask_b32 v{t}, v{t+1}, v{t}, s[86:87]")
        a(f"v_cndmask_b32 v{t+2}, v{t+3}, v{t+2}, s[88:89]")
        if rt == 0:
            a(f"v_fma_f32 v{t}, v{t}, s80, v146")
            a(f"v_fma_f32 v{t+2}, v{t+2}, s80, v147")
        else:
            a(f"v_mul_f32 v{t}, s80, v{t}")
            a(f"v_mul_f32 v{t+2}, s80, v{t+2}")
        a(f"v_max_f32 v{t+1}, v{t}, v{t+2}")
        a(f"v_mov_b32 v{t+3}, v{t+1}")
    each(s1)
    a("s_nop 1")
    each(lambda rt, c, u: a(f"v_permlane32_swap_b32 v{TM(c)+1}, v{TM(c)+3}"))
    def s2(rt, c, u):
        t = TM(c)
        a(f"v_max_f32 v{t+1}, v{t+1}, v{t+3}")
        a(f"v_mov_b32 v{t+3}, v{t+1}")
    each(s2)
    a("s_nop 1")
    each(lambda rt, c, u: a(f"v_permlane16_swap_b32 v{TM(c)+1}, v{TM(c)+3}"))
    def s3(rt, c, u):
        t = TM(c)
        a(f"v_max_f32 v{t+1}, v{t+1}, v{t+3}")
        a(f"v_sub_f32 v{t}, v{t}, v{t+1}")
        a(f"v_sub_f32 v{t+2}, v{t+2}, v{t+1}")
        a(f"v_exp_f32 v{t}, v{t}")
        a(f"v_exp_f32 v{t+2}, v{t+2}")
    each(s3)
    a("s_nop 0")
    def s4(rt, c, u):
        t = TM(c)
        a(f"v_add_f32 v{t+1}, v{t}, v{t+2}")
        a(f"v_mov_b32 v{t+3}, v{t+1}")
    each(s4)
    a("s_nop 1")
    each(lambda rt, c, u: a(f"v_permlane32_swap_b32 v{TM(c)+1}, v{TM(c)+3}"))
    def s5(rt, c, u):
        t = TM(c)
        a(f"v_add_f32 v{t+1}, v{t+1}, v{t+3}")
        a(f"v_mov_b32 v{t+3}, v{t+1}")
    each(s5)
    a("s_nop 1")
    each(lambda rt, c, u: a(f"v_permlane16_swap_b32 v{TM(c)+1}, v{TM(c)+3}"))
    def s6(rt, c, u):
        t = TM(c)
        a(f"v_add_f32 v{t+1}, v{t+1}, v{t+3}")
        a(f"v_rcp_f32 v{t+1}, v{t+1}")
    each(s6)
    a("s_nop 0")
    def s7(rt, c, u):
        t = TM(c); pf = PF(c)
        a(f"v_mul_f32 v{t}, v{t}, v{t+1}")
        a(f"v_mul_f32 v{t+2}, v{t+2}, v{t+1}")
        a(f"v_cvt_pk_bf16_f32 v{t}, v{t}, v{t}")
        a(f"v_cvt_pk_bf16_f32 v{t+2}, v{t+2}, v{t+2}")
        a(f"v_and_b32 v{pf}, v{t}, v143")
        a(f"v_and_b32 v{pf+1}, v{t+2}, v145")
        a(f"v_and_b32 v{pf+2}, v{t}, v142")
        a(f"v_and_b32 v{pf+3}, v{t+2}, v144")
    each(s7)
    a("s_waitcnt lgkmcnt(0)")
    a("s_nop 0")
    for (rt, c, u) in chains:
        a(f"v_mfma_f32_16x16x32_bf16 {vr(SS(c),4)}, {ar(VM(u)+2*rt,4)}, {vr(PF(c),4)}, 0")
    for (rt, c, u) in chains:
        a(f"v_mfma_f32_16x16x32_bf16 {vr(OT(rt),4)}, {ar(VT(u)+2*rt,4)}, {vr(PF(c),4)}, {vr(OT(rt),4)}")
    a("s_nop 3")
    for (rt, c, u) in chains:
        o = SS(c); t = PK(c)
        a(f"v_cvt_pk_bf16_f32 v{t}, v{o}, v{o+1}")
        a(f"v_cvt_pk_bf16_f32 v{t+1}, v{o+2}, v{o+3}")
        a(f"buffer_store_dwordx2 {vr(t,2)}, v{154+u}, s[32:35], s60 offen offset:{rt*1024}")
    for rt in range(2):
        o = OT(rt); t = TM(rt)
        a(f"v_cvt_pk_bf16_f32 v{t}, v{o}, v{o+1}")
        a(f"v_cvt_pk_bf16_f32 v{t+1}, v{o+2}, v{o+3}")
    a("s_cmp_eq_u32 s47, 0")
    a("s_cselect_b32 exec_lo, -1, 0")
    a("s_cselect_b32 exec_hi, 0, -1")
    for rt in range(2):
        a(f"buffer_store_dwordx2 {vr(TM(rt),2)}, v156, s[32:35], s60 offen offset:{rt*1024}")
    a("s_mov_b64 exec, -1")

def finish(a, Q, stamps):
    P = "K1Q" if Q else "K1F"
    if not Q:
        a("s_waitcnt vmcnt(0)")
        a("s_barrier")
    a("s_cmp_eq_u32 s47, 0")
    a(f"s_cbranch_scc1 {P}_end")
    repack_store(a)
    a.label(f"{P}_end")
    if stamps:
        a("s_memtime s[92:93]")
        a("s_waitcnt lgkmcnt(0)")
        a("s_sub_u32 s92, s92, s90")
        a("s_sub_u32 s94, s94, s90")
        a("s_sub_u32 s96, s96, s90")
        a(f"s_add_u32 s32, s10, {33<<20}")
        a("s_addc_u32 s33, s11, 0")
        a("s_mov_b32 s34, 0x100000")
        a("s_lshl_b32 s36, s2, 3")
        a("s_add_u32 s36, s36, s41")
        a("s_lshl_b32 s36, s36, 4")
        a("v_mov_b32 v10, s36")
        a("v_mov_b32 v12, s92")
        a("v_mov_b32 v13, s94")
        a("v_mov_b32 v14, s96")
        a("v_mov_b32 v15, s90")
        a("buffer_store_dwordx4 v[12:15], v10, s[32:35], 0 offen")
    a("s_endpgm")

def repack_issue(a):
    a(f"v_lshrrev_b32 v158, 3, v{V_LANE}")
    a("s_lshl_b32 s62, s20, 3")
    a("v_add_u32 v158, s62, v158")
    a("v_mul_u32_u24 v158, 0x500, v158")
    a(f"v_and_b32 v159, 7, v{V_LANE}")
    a("v_lshl_add_u32 v158, v159, 4, v158")
    a("s_mov_b32 s71, 0x20000")
    a(f"s_mov_b32 s81, {1728*1280}")
    a("s_lshl_b32 s82, s20, 10")
    for i in range(3):
        a("s_mul_i32 s62, s2, 3")
        a(f"s_add_u32 s62, s62, {i}")
        a("s_mul_i32 s63, s62, 0x667")
        a("s_lshr_b32 s63, s63, 14")
        a("s_mul_i32 s72, s63, 10")
        a("s_sub_u32 s72, s62, s72")
        a(f"s_mov_b32 s{74+2*i}, s63")
        a(f"s_mov_b32 s{75+2*i}, s72")
        a("s_sub_u32 s73, s63, 20")
        a("s_cmp_lt_u32 s63, 20")
        a("s_cselect_b32 s68, s8, s16")
        a("s_cselect_b32 s69, s9, s17")
        a(f"s_cselect_b32 s70, {640*1280}, s81")
        a("s_cselect_b32 s73, s63, s73")
        a("s_mul_i32 s73, s73, 40960")
        a("s_lshl_b32 s72, s72, 7")
        a("s_add_u32 s73, s73, s72")
        a(f"s_add_u32 m0, s82, {RPK + 4096*i}")
        a("s_nop 0")
        a("buffer_load_dwordx4 v158, s[68:71], s73 offen lds")

def repack_store(a):
    a(f"v_lshrrev_b32 v158, 2, v{V_LANE}")
    a("v_lshlrev_b32 v158, 7, v158")
    a(f"v_and_b32 v159, 3, v{V_LANE}")
    a("v_lshl_add_u32 v158, v159, 3, v158")
    a("s_lshl_b32 s62, s20, 5")
    a(f"s_add_u32 s62, s62, {RPK}")
    a("v_add_u32 v158, s62, v158")
    a(f"s_add_u32 s68, s10, {WS_W3}")
    a("s_addc_u32 s69, s11, 0")
    a(f"s_mov_b32 s70, {8*74*5120}")
    a("s_mov_b32 s71, 0x20000")
    a(f"v_lshlrev_b32 v159, 4, v{V_LANE}")
    for i in range(3):
        a(f"ds_read_b64_tr_b16 {vr(140+4*i,2)}, v158 offset:{4096*i}")
        a(f"ds_read_b64_tr_b16 {vr(142+4*i,2)}, v158 offset:{4096*i+2048}")
    for i in range(3):
        a(f"s_lshl_b32 s72, s{75+2*i}, 2")
        a("s_add_u32 s72, s72, s20")
        a("s_mul_i32 s62, s72, 52")
        a("s_lshr_b32 s62, s62, 8")
        a("s_mul_i32 s63, s62, 5")
        a("s_sub_u32 s63, s72, s63")
        a("s_mul_i32 s62, s62, 74")
        a(f"s_add_u32 s62, s62, s{74+2*i}")
        a("s_mul_i32 s62, s62, 5")
        a("s_add_u32 s62, s62, s63")
        a("s_lshl_b32 s62, s62, 10")
        a(f"s_cmp_ge_u32 s{74+2*i}, 74")
        a("s_cselect_b32 s62, 0x7f000000, s62")
        a(f"s_waitcnt lgkmcnt({4-2*i})")
        a(f"buffer_store_dwordx4 {vr(140+4*i,4)}, v159, s[68:71], s62 offen")

def ffn_epilogue(a, acc):
    a("s_cmp_eq_u32 s47, 0")
    a("s_cbranch_scc1 K1F_gate")
    repack_issue(a)
    a("s_branch K1F_mish")
    a.label("K1F_gate")
    a("s_lshl_b32 s62, s22, 7")
    a("s_lshl_b32 s63, s23, 4")
    a("s_add_u32 s62, s62, s63")
    a("s_lshl_b32 s63, s20, 2")
    a("s_add_u32 s62, s62, s63")
    a(f"v_add_u32 v156, s62, v{V_Q}")
    a(f"v_mul_u32_u24 v157, 80, v{V_I}")
    a("v_mul_u32_u24 v158, 0x500, v156")
    a("v_add_u32 v158, v158, v157")
    a("s_mov_b32 s84, s18")
    a("s_mov_b32 s85, s19")
    a("s_mov_b32 s86, 1280")
    a("s_mov_b32 s87, 0x20000")
    for i in range(5):
        a(f"buffer_load_dwordx4 {vr(112+4*i,4)}, v158, s[24:27], 0 offen offset:{16*i}")
        a(f"buffer_load_dwordx4 {vr(132+4*i,4)}, v157, s[84:87], 0 offen offset:{16*i}")
    a.label("K1F_mish")
    a("s_add_u32 s62, s42, 20")
    a("s_lshl_b32 s62, s62, 12")
    a("s_add_u32 s62, s62, s60")
    a("s_lshl_b32 s63, s47, 3")
    a("s_add_u32 s63, s63, s62")
    a(f"s_add_u32 s63, s63, {3*4096}")
    a("s_lshl_b32 s66, s47, 14")
    a("s_add_u32 s62, s62, s66")
    a(f"v_lshlrev_b32 v159, 4, v{V_LANE}")
    a(f"s_mov_b32 s88, {f32(LOG2E)}")
    a(f"s_mov_b32 s89, {f32(LOG2E)}")
    a("v_mov_b32 v104, 1.0")
    a("v_mov_b32 v105, 1.0")
    a("v_mov_b32 v106, -2.0")
    a("v_mov_b32 v107, -2.0")
    def mish(prs, T):
        n = len(prs)
        for i, r in enumerate(prs): a(f"v_pk_mul_f32 {vr(T+2*i,2)}, {vr(r,2)}, s[88:89]")
        for i in range(2*n): a(f"v_exp_f32 v{T+i}, v{T+i}")
        for i in range(n): a(f"v_pk_add_f32 {vr(T+2*i,2)}, {vr(T+2*i,2)}, v[104:105]")
        for i in range(n): a(f"v_pk_fma_f32 {vr(T+2*i,2)}, {vr(T+2*i,2)}, {vr(T+2*i,2)}, v[104:105]")
        for i in range(2*n): a(f"v_rcp_f32 v{T+i}, v{T+i}")
        for i in range(n): a(f"v_pk_fma_f32 {vr(T+2*i,2)}, {vr(T+2*i,2)}, v[106:107], v[104:105]")
        for i, r in enumerate(prs): a(f"v_pk_mul_f32 {vr(T+2*i,2)}, {vr(T+2*i,2)}, {vr(r,2)}")
    for p in range(3):
        if p == 2:
            a("s_lshl_b32 s66, s47, 3")
            a("s_add_u32 s66, s66, s23")
            a("s_cmp_lt_u32 s66, 14")
            a("s_cselect_b32 s62, s62, 0x7f000000")
        for rt in range(2):
            T = 88 + 8 * rt
            prs = [acc(rt, 2*p), acc(rt, 2*p) + 2, acc(rt, 2*p+1), acc(rt, 2*p+1) + 2]
            mish(prs, T)
            d = acc(rt, 2*p)
            for i in range(4): a(f"v_cvt_pk_bf16_f32 v{d+i}, v{T+2*i}, v{T+2*i+1}")
            a(f"buffer_store_dwordx4 {vr(d,4)}, v159, s[32:35], s62 offen offset:{rt*1024}")
        a("s_add_u32 s62, s62, 4096")
    prs = [acc(0, 6), acc(0, 6) + 2, acc(1, 6), acc(1, 6) + 2]
    mish(prs, 88)
    d = acc(0, 6)
    for i in range(4): a(f"v_cvt_pk_bf16_f32 v{d+i}, v{88+2*i}, v{88+2*i+1}")
    a(f"buffer_store_dwordx2 {vr(d,2)}, v159, s[32:35], s63 offen")
    a(f"buffer_store_dwordx2 {vr(d+2,2)}, v159, s[32:35], s63 offen offset:1024")
    a("s_cmp_eq_u32 s47, 0")
    a("s_cbranch_scc0 K1F_nogate")
    a("s_waitcnt vmcnt(8)")
    a("v_mov_b32 v88, 0")
    for i in range(20):
        a(f"v_dot2c_f32_bf16 v88, v{112+i}, v{132+i}")
    a("s_nop 3")
    for sh in (8, 4, 2, 1):
        a(f"v_add_f32_dpp v88, v88, v88 row_ror:{sh} row_mask:0xf bank_mask:0xf")
        a("s_nop 1")
    a("v_mul_f32 v88, s88, v88")
    a("v_exp_f32 v88, -v88")
    a("s_nop 0")
    a("v_add_f32 v88, 1.0, v88")
    a("v_rcp_f32 v88, v88")
    a(f"s_add_u32 s84, s10, {WS_G}")
    a("s_addc_u32 s85, s11, 0")
    a("s_mov_b32 s86, 8192")
    a("s_mov_b32 s87, 0x20000")
    a("v_lshlrev_b32 v156, 2, v156")
    a(f"v_cmp_eq_u32 vcc, 0, v{V_I}")
    a("s_and_saveexec_b64 s[82:83], vcc")
    a("buffer_store_dword v88, v156, s[84:87], 0 offen")
    a("s_mov_b64 exec, s[82:83]")
    a.label("K1F_nogate")

if __name__ == "__main__":
    import sys
    opt = sys.argv[2] if len(sys.argv) > 2 else ""
    a = Asm()
    info = gen_k1(a, "k1_kernel", stamps=True, rot=("norot" not in opt), abl=opt, prio=("prio" in opt), sched=eval(sys.argv[3]) if len(sys.argv) > 3 else None)
    hdr = f"; @launch kernel=k1_kernel grid=(256,1,1) block=(512,1,1) lds={info['lds']}\n"
    hdr += '.amdgcn_target "amdgcn-amd-amdhsa--gfx950"\n.text\n'
    txt = hdr + a.text() + '.section .rodata,"a"\n.p2align 6\n' + descriptor("k1_kernel", info['nvgpr'], info['nsgpr'], info['accum'])
    open(sys.argv[1], "w").write(txt)
```

```python
from asmlib import *
from k3 import WS_A3, WS_W3, WS_G

ROWB = 480
KST = 32 * ROWB
BST = 2 * KST
AST = 144 * 128
STG = BST + AST
SK = 336
QX = 49152
R = 3
RPK = R * STG

LOG2E = 1.4426950408889634
import struct
def f32(x): return "0x%08x" % struct.unpack("<I", struct.pack("<f", x))[0]

V_DMA = 1
V_TCH = 7
V_LANE = 9
V_TR = 10
V_AR = 16
V_I = 20; V_Q = 21
ACC = 32
NV = 160
def bfrag(buf, t): return buf * 32 + t * 4
def afrag(buf, rt): return 64 + buf * 12 + rt * 4

SCHED = {}
TP = 0
XT = False
def gen_k1(a0, name, stamps=False, rot=True, abl="", prio=False, sched=None, stflag="", tp=0, xt=False):
    global SCHED, TP, XT
    TP = tp; XT = xt
    SCHED = sched or {}
    class Filt:
        def __call__(self, ln):
            if "noB" in abl and "s[28:31], s44" in ln: ln = ln.replace("s44 offen", "s98 offen")
            if "noM" in abl and ln.startswith("v_mfma") and "], a[" in ln and ln.count("a[") == 2: return
            if "noT" in abl and (ln.startswith("ds_read_b64_tr_b16 a") or ln.startswith("ds_read_b128 a")): return
            if "noD" in abl and ln.endswith(" lds") and ("s40 offen" in ln or "s44 offen" in ln): return
            if "dropA" in abl and ln.endswith(" lds") and "s40 offen" in ln: return
            if "dropB" in abl and ln.endswith(" lds") and "s44 offen" in ln: return
            if stflag and ln.startswith("buffer_store"): ln = ln + " " + stflag
            a0(ln)
        def label(self, n): a0.label(n)
        L = a0.L
    a = Filt()
    kernel_header(a, name)
    if abl: a("s_mov_b32 s98, 0x7f000000")
    a("s_cmp_ge_u32 s2, 256")
    a("s_cbranch_scc1 K1_done")
    if stamps: a("s_memtime s[90:91]")
    if stamps == "dbg":
        a("s_memrealtime s[86:87]")
        a("s_waitcnt lgkmcnt(0)")
        a("s_mov_b32 s99, s86")
    a("s_load_dwordx4 s[4:7], s[0:1], 0")
    a("s_load_dwordx2 s[8:9], s[0:1], 16")
    a("s_load_dwordx4 s[12:15], s[0:1], 32")
    a("s_load_dwordx4 s[16:19], s[0:1], 48")
    a("s_load_dwordx2 s[10:11], s[0:1], 80")
    a("v_lshrrev_b32 v28, 6, v0")
    a(f"v_and_b32 v{V_LANE}, 63, v0")
    a("v_readfirstlane_b32 s41, v28")
    a("s_and_b32 s3, s2, 7")
    a("s_lshr_b32 s21, s2, 3")
    a("s_lshr_b32 s22, s3, 1")
    a("s_lshl_b32 s22, s22, 2")
    a("s_lshr_b32 s23, s21, 3")
    a("s_add_u32 s22, s22, s23")
    a("s_and_b32 s21, s21, 7")
    a("s_mul_i32 s36, s23, 5")
    a("s_lshr_b32 s36, s36, 1")
    a("s_add_u32 s36, s36, s21")
    a("s_cmp_ge_u32 s36, 10")
    a("s_cselect_b32 s37, 10, 0")
    a("s_sub_u32 s36, s36, s37")
    if not rot: a("s_mov_b32 s36, 0")
    if rot == 2:
        a("s_add_u32 s36, s23, s21")
        a("s_and_b32 s36, s36, 1")
        a("s_mul_i32 s36, s36, 5")
    if rot == 3:
        a("s_mul_i32 s36, s23, 5")
        a("s_lshr_b32 s36, s36, 1")
    if rot == 5:
        a("s_mul_i32 s36, s3, 5")
        a("s_lshr_b32 s36, s36, 2")
    if rot == 6:
        a("s_add_u32 s36, s23, s21")
        a("s_and_b32 s36, s36, 3")
        a("s_mul_i32 s37, s3, 5")
        a("s_lshr_b32 s37, s37, 2")
        a("s_add_u32 s36, s36, s37")
        a("s_cmp_ge_u32 s36, 10")
        a("s_cselect_b32 s37, 10, 0")
        a("s_sub_u32 s36, s36, s37")
    if rot == 7:
        a("s_add_u32 s36, s23, s21")
        a("s_and_b32 s36, s36, 1")
        a("s_mul_i32 s37, s3, 5")
        a("s_lshr_b32 s37, s37, 2")
        a("s_add_u32 s36, s36, s37")
        a("s_cmp_ge_u32 s36, 10")
        a("s_cselect_b32 s37, 10, 0")
        a("s_sub_u32 s36, s36, s37")
    if rot == 4:
        a("s_add_u32 s36, s23, s21")
        a("s_and_b32 s36, s36, 3")
    a("s_and_b32 s23, s3, 1")
    a("s_lshl_b32 s23, s23, 2")
    a("s_and_b32 s37, s21, 3")
    a("s_add_u32 s23, s23, s37")
    a("s_lshr_b32 s21, s21, 2")
    a("s_and_b32 s20, s41, 3")
    a("s_lshr_b32 s47, s41, 2")
    a(f"v_and_b32 v{V_I}, 15, v{V_LANE}")
    a(f"v_lshrrev_b32 v{V_Q}, 4, v{V_LANE}")
    a("s_mul_i32 s39, s41, 6144")
    a("s_mov_b32 s27, 0x20000")
    a("s_mov_b32 s31, 0x20000")
    a(f"s_mov_b32 s26, {2048*1280}")
    a("s_mov_b32 s45, s36")
    a("s_mov_b32 s46, 0")
    a("s_mov_b32 s49, 0")
    a("s_mov_b64 s[64:65], -1")
    if prio:
        a("s_cmp_eq_u32 s47, 0")
        a("s_cbranch_scc1 K1_noprio")
        a("s_setprio 1")
        a.label("K1_noprio")
    a("s_cmp_eq_u32 s21, 1")
    a("s_cbranch_scc1 K1_ffn")
    variant(a, "Q", stamps, abl)
    a.label("K1_ffn")
    variant(a, "F", stamps, abl)
    a.label("K1_done")
    a("s_endpgm")
    lds = RPK
    return dict(lds=lds, nvgpr=NV + 88, accum=NV, nsgpr=100, block=512)

def emit(a, groups):
    for g in groups:
        for i in g: a(i)

def variant(a, kind, stamps, abl):
    Q = kind == "Q"
    pitch = 3840 if Q else 3456
    P = "K1" + kind
    nL = 6
    inloop = [False]
    def half(hf):
        L = []
        for i in range(3):
            g = []
            if i == 0:
                g += ["s_mov_b64 exec, s[64:65]", f"s_add_u32 m0, s49, s{39 if hf == 0 else 48}", "s_nop 0"]
            else:
                g += ["s_mov_b64 exec, s[64:65]"]
            g.append(f"buffer_load_dwordx4 v{V_DMA+3*hf+i}, s[28:31], s44 offen offset:{i*1024} lds")
            g.append("s_mov_b64 exec, -1")
            L.append(g)
        return L
    def touch():
        if not TP: return []
        return [["s_mov_b64 exec, s[68:69]", f"buffer_load_dword v8, v{V_TCH}, s[28:31], s70 offen", "s_mov_b64 exec, -1",
                 "s_add_u32 s70, s70, s50"]]
    def adv():
        if TP:
            return [["s_add_u32 s44, s44, s50", "s_add_u32 s46, s46, 1", "s_cmp_ge_u32 s46, 10", "s_cselect_b64 s[64:65], 1, s[64:65]", "s_cselect_b32 s44, 0, s44"],
                    [f"s_cmp_ge_u32 s46, {10-TP}", "s_cselect_b64 s[68:69], 1, s[68:69]", "s_cselect_b32 s70, 0, s70"],
                    [f"s_add_u32 s49, s49, {STG}", f"s_cmp_eq_u32 s49, {R*STG}", "s_cselect_b32 s49, 0, s49"]]
        return [["s_add_u32 s45, s45, 1", "s_add_u32 s44, s44, s50", "s_cmp_eq_u32 s45, 10", "s_cselect_b32 s45, 0, s45", "s_cselect_b32 s44, 0, s44"],
                [f"s_add_u32 s49, s49, {STG}", f"s_cmp_eq_u32 s49, {R*STG}", "s_cselect_b32 s49, 0, s49"],
                ["s_add_u32 s46, s46, 1", f"s_cmp_ge_u32 s46, {10 if Q else 11}", "s_cselect_b64 s[64:65], 1, s[64:65]", "s_cselect_b32 s49, 0x30000, s49"]] + \
               ([] if (Q or not inloop[0]) else [["s_cmp_eq_u32 s46, 10", "s_cbranch_scc1 K1F_swap", "K1F_swapped:"]])
    def load_list(part=None):
        if part == 0: return half(0)
        if part == 1:
            inloop[0] = True
            r = half(1) + touch() + adv()
            inloop[0] = False
            return r
        if part == "first": return half(0) + half(1)
        if part == "firstT": return touch() * (TP - 1) + adv()
        return half(0) + half(1) + touch() + adv()
    a("s_add_u32 s48, s39, 3072")
    if Q:
        a("s_mul_i32 s37, s23, 160")
    else:
        a("s_mul_i32 s42, s23, 7")
        a("s_cmp_eq_u32 s23, 7")
        a("s_cselect_b32 s42, 48, s42")
        a("s_cmp_lt_u32 s23, 6")
        a("s_cselect_b32 s43, 28, 24")
        a("s_lshl_b32 s37, s42, 6")
    a("s_cmp_ge_u32 s41, 5")
    a(f"s_cbranch_scc1 {P}_aload")
    a(f"s_mov_b32 s50, {64*pitch}")
    a(f"s_mov_b32 s30, {640*pitch}")
    a("s_mul_i32 s38, s41, 384")
    if not Q: a("v_mov_b32 v40, 0x7f000000")
    a(f"v_add_u32 v36, s38, v{V_LANE}")
    for i in range(6):
        a(f"v_add_u32 v32, {i*64}, v36")
        a("v_mul_u32_u24 v33, 0x889, v32")
        a("v_lshrrev_b32 v33, 16, v33")
        a("v_mul_u32_u24 v34, 30, v33")
        a("v_sub_u32 v32, v32, v34")
        a("v_and_b32 v34, 0x33, v33")
        a("v_and_b32 v35, 4, v33")
        a("v_lshl_or_b32 v34, v35, 1, v34")
        a("v_and_b32 v35, 8, v33")
        a("v_lshrrev_b32 v35, 1, v35")
        a("v_or_b32 v33, v34, v35")
        a(f"v_mul_u32_u24 v33, {pitch}, v33")
        a("v_lshl_add_u32 v33, v32, 4, v33")
        if Q:
            a("v_mul_u32_u24 v34, 0x667, v32")
            a("v_lshrrev_b32 v34, 14, v34")
            a("v_mul_u32_u24 v34, 1120, v34")
            a("v_add3_u32 v33, v33, v34, s37")
            a(f"v_subrev_u32 v{V_DMA+i}, {(i%3)*1024}, v33")
        else:
            a("v_add_u32 v33, s37, v33")
            a("v_cmp_gt_u32 vcc, s43, v32")
            a(f"v_subrev_u32 v33, {(i%3)*1024}, v33")
            a("s_nop 0")
            a(f"v_cndmask_b32 v{V_DMA+i}, v40, v33, vcc")
    a("s_waitcnt lgkmcnt(0)")
    a(f"s_mov_b32 s28, s{6 if Q else 12}")
    a(f"s_mov_b32 s29, s{7 if Q else 13}")
    a(f"s_branch {P}_loads")
    a.label(f"{P}_aload")
    a("s_movk_i32 s50, 128")
    a(f"s_mov_b32 s30, {2048*1280}")
    a(f"v_lshrrev_b32 v28, 3, v{V_LANE}")
    a(f"v_and_b32 v29, 7, v{V_LANE}")
    a("v_lshrrev_b32 v30, 1, v28")
    a("v_xor_b32 v30, v29, v30")
    a("v_xor_b32 v31, 4, v30")
    a("s_sub_u32 s38, s41, 5")
    a("s_mul_i32 s38, s38, 48")
    a("s_lshl_b32 s62, s22, 7")
    a("s_add_u32 s38, s38, s62")
    a("v_add_u32 v28, s38, v28")
    a("v_mul_u32_u24 v28, 0x500, v28")
    a("v_lshl_add_u32 v30, v30, 4, v28")
    a("v_lshl_add_u32 v31, v31, 4, v28")
    a("s_cmp_eq_u32 s41, 7")
    a(f"s_cselect_b32 s62, {-144*1280}, 0")
    for i in range(6):
        a(f"v_add_u32 v{V_DMA+i}, {i*10240 - (i%3)*1024}, v{30 + (i&1)}")
        if i >= 4: a(f"v_add_u32 v{V_DMA+i}, s62, v{V_DMA+i}")
    a("s_waitcnt lgkmcnt(0)")
    a("s_mov_b32 s28, s4")
    a("s_mov_b32 s29, s5")
    a.label(f"{P}_loads")
    if stamps in ("pro", "pro2"): a("s_memtime s[86:87]")
    a("s_mul_i32 s44, s36, s50")
    a("s_mov_b32 s24, s4")
    a("s_mov_b32 s25, s5")
    emit(a, load_list("first"))
    if TP:
        a("s_lshl_b32 s70, s50, 1")
        a("s_and_b32 s38, s22, 3")
        a("s_lshl_b32 s38, s38, 4")
        a("s_mov_b32 s69, 0")
        a("s_cmp_ge_u32 s41, 5")
        a(f"s_cbranch_scc1 {P}_tA")
        if Q:
            a("s_mul_i32 s62, s41, 20")
            a(f"v_add_u32 v32, s62, v{V_LANE}")
            a("v_mul_u32_u24 v33, 43, v32")
            a("v_lshrrev_b32 v33, 8, v33")
            a("v_mul_u32_u24 v34, 6, v33")
            a("v_sub_u32 v34, v32, v34")
            a("v_lshrrev_b32 v35, 1, v34")
            a("v_mul_u32_u24 v35, 1280, v35")
            a("v_and_b32 v34, 1, v34")
            a("v_lshl_add_u32 v35, v34, 7, v35")
            a("v_add_u32 v33, s38, v33")
            a(f"v_mul_u32_u24 v33, {pitch}, v33")
            a("s_and_b32 s38, s37, 0xffffff80")
            a(f"v_add3_u32 v{V_TCH}, v33, v35, s38")
            a("s_cmp_eq_u32 s41, 4")
            a("s_mov_b32 s68, 0xfffff")
            a("s_cselect_b32 s68, 0xffff, s68")
        else:
            a("s_mul_i32 s62, s41, 13")
            a(f"v_add_u32 v32, s62, v{V_LANE}")
            a("v_lshrrev_b32 v33, 2, v32")
            a("v_and_b32 v34, 3, v32")
            a("v_add_u32 v33, s38, v33")
            a(f"v_mul_u32_u24 v33, {pitch}, v33")
            a("v_lshl_add_u32 v33, v34, 7, v33")
            a("s_and_b32 s38, s37, 0xffffff80")
            a(f"v_add_u32 v{V_TCH}, s38, v33")
            a("s_cmp_eq_u32 s41, 4")
            a("s_mov_b32 s68, 0x1fff")
            a("s_cselect_b32 s68, 0xfff, s68")
        a(f"s_branch {P}_tdone")
        a.label(f"{P}_tA")
        a("s_lshr_b32 s38, s2, 3")
        a("s_and_b32 s38, s38, 7")
        a("s_mul_i32 s38, s38, 18")
        a("s_mul_i32 s62, s41, 6")
        a("s_add_u32 s38, s38, s62")
        a("s_lshl_b32 s62, s22, 7")
        a("s_add_u32 s38, s38, s62")
        a("s_sub_u32 s38, s38, 46")
        a(f"v_add_u32 v32, s38, v{V_LANE}")
        a("s_movk_i32 s38, 0x500")
        a(f"v_mul_lo_u32 v{V_TCH}, v32, s38")
        a(f"s_mov_b32 s68, {1 if XT else 63}")
        a.label(f"{P}_tdone")
    if stamps == "pro2":
        a("s_waitcnt vmcnt(0)")
        a("s_memtime s[88:89]")
        a("s_waitcnt lgkmcnt(0)")
        a("s_mov_b32 s98, s86")
        a("s_mov_b32 s99, s88")
    if not Q:
        a("s_mov_b32 s32, s14")
        a("s_mov_b32 s33, s15")
        a("s_mov_b32 s34, 3456")
        a("s_mov_b32 s35, 0x20000")
        a("s_lshl_b32 s52, s47, 8")
        a("s_lshl_b32 s53, s47, 5")
        a("s_add_u32 s53, s53, 192")
        a(f"v_lshlrev_b32 v32, 3, v{V_Q}")
        a("v_add_u32 v32, s37, v32")
        for t in range(6):
            a(f"buffer_load_dwordx2 {vr(100+2*t,2)}, v32, s[32:35], s52 offen offset:{32*t}")
        a(f"buffer_load_dwordx2 {vr(112,2)}, v32, s[32:35], s53 offen")
    if stamps == "pro":
        a("s_memtime s[88:89]")
        a("s_waitcnt lgkmcnt(0)")
        a("s_mov_b32 s98, s86")
        a("s_mov_b32 s99, s88")
    if XT:
        a("s_lshr_b32 s38, s2, 3")
        a("s_and_b32 s38, s38, 7")
        a("s_mul_i32 s38, s38, 18")
        a("s_mul_i32 s62, s41, 6")
        a("s_add_u32 s38, s38, s62")
        a("s_lshl_b32 s62, s22, 7")
        a("s_add_u32 s38, s38, s62")
        a("s_sub_u32 s38, s38, 46")
        a("s_mul_i32 s38, s38, 0x500")
        a(f"v_lshlrev_b32 v32, 7, v{V_LANE}")
        a("v_add_u32 v32, s38, v32")
        a("s_cmp_ge_u32 s41, 5")
        a("s_cselect_b32 exec_lo, -1, 1")
        a("s_cselect_b32 exec_hi, 0xfffffff, 0")
        a("buffer_load_dword v8, v32, s[24:27], 0 offen")
        a("s_mov_b64 exec, -1")
    emit(a, load_list("firstT"))
    a(f"v_lshrrev_b32 v28, 5, v{V_LANE}")
    a("v_lshlrev_b32 v28, 4, v28")
    a(f"v_bfe_u32 v29, v{V_LANE}, 2, 3")
    a("v_add_u32 v28, v28, v29")
    a(f"v_mul_u32_u24 v28, {ROWB}, v28")
    a(f"v_and_b32 v29, 3, v{V_LANE}")
    a(f"v_lshl_add_u32 v27, v29, 3, v28")
    a(f"v_lshrrev_b32 v30, 1, v{V_I}")
    a(f"v_xor_b32 v30, v{V_Q}, v30")
    a(f"v_lshlrev_b32 v31, 7, v{V_I}")
    a("v_lshl_add_u32 v30, v30, 4, v31")
    a("v_xor_b32 v31, 64, v30")
    a("s_lshl_b32 s63, s20, 12")
    a(f"s_add_u32 s63, s63, {BST}")
    a(f"v_add_u32 v{V_AR}, s63, v30")
    a(f"v_add_u32 v{V_AR+1}, s63, v31")
    a("s_mov_b32 s51, 10")
    a(f"s_mov_b32 s57, {STG}")
    a("s_mov_b32 s58, 1")
    a(f"s_mov_b32 s59, {STG}")
    if Q:
        a(f"v_add_u32 v{V_AR+2}, {BST+16384}, v30")
        a(f"v_add_u32 v{V_AR+3}, {BST+16384}, v31")
        a("s_cmp_eq_u32 s47, 1")
        a("s_cbranch_scc1 K1Q_n1")
        body(a, "Q0", stamps, load_list, nL)
        a.label("K1Q_n1")
        body(a, "Q1", stamps, load_list, nL)
        a.label("K1Q_attn")
        attn_common(a)
    else:
        body(a, "F", stamps, load_list, nL)
    finish(a, Q, stamps)
    if not Q: repack_swap(a)

def kv_tables(kind):
    if kind == "Q0":
        return {1: (32, -32, 0), 2: (64, 0, -64), 3: (0, 0, 0)}
    else:
        return {1: (64, 64, -64, 0, 0), 2: (128, 128, 0, -128, 0), 3: (192, 0, 0, 0, -192)}

def body(a, kind, stamps, load_list, nL):
    Q = kind != "F"
    NT = {"Q0": 8, "Q1": 7, "F": 7}[kind]
    NH = {"Q0": 1, "Q1": 2, "F": 0}[kind]
    P = "K1" + kind
    def acc(rt, t): return ACC + (rt * NT + t) * 4
    HALO = ACC + 2 * NT * 4
    NACC = 2 * NT * 4 + 4 * NH
    if kind == "F":
        a(f"v_add_u32 v{V_TR}, s52, v27")
        a(f"v_add_u32 v{V_TR+1}, s53, v27")
        ntr = 2
        def tr_addr(t): return (V_TR, 32 * t) if t < 6 else (V_TR + 1, 0)
        halo_slots = []
    else:
        tab = kv_tables(kind); nk = len(tab[1])
        for k in range(nk): a(f"s_mov_b32 s{52+k}, 0")
        for w in (1, 2, 3):
            if not any(tab[w]): continue
            a(f"s_cmp_eq_u32 s20, {w}")
            for k in range(nk):
                if tab[w][k]: a(f"s_cselect_b32 s{52+k}, {tab[w][k]}, s{52+k}")
        if kind == "Q0":
            a(f"v_mov_b32 v{V_TR}, v27")
            a("v_mul_u32_u24 v30, 40, v29")
            a(f"v_add3_u32 v{V_TR+1}, v28, v30, 32")
            for k in range(3): a(f"v_add_u32 v{V_TR+2+k}, s{52+k}, v27")
            ntr = 5
            def tr_addr(t):
                if t < 4: return V_TR, 40 * t
                if t == 4: return V_TR + 1, 0
                return V_TR + 2 + (t - 5), 160 + 32 * (t - 5)
            halo_slots = [5]
        else:
            for k in range(5): a(f"v_add_u32 v{V_TR+k}, s{52+k}, v27")
            ntr = 5
            def tr_addr(t):
                return V_TR + (0, 1, 2, 2, 3, 3, 4)[t], 160 + 96 + 32 * t
            halo_slots = [0, 1]
    bump = list(range(V_TR, V_TR + ntr)) + list(range(V_AR, V_AR + (4 if Q else 2)))
    def rd_list(buf, kk):
        L = []
        for rt in range(2):
            L.append([f"ds_read_b128 {ar(afrag(buf, rt), 4)}, v{V_AR+kk} offset:{rt*2048}"])
        if Q: L.append([f"ds_read_b128 {ar(afrag(buf, 2), 4)}, v{V_AR+2+kk}"])
        for t in range(NT):
            reg, off = tr_addr(t)
            for h in range(2):
                L.append([f"ds_read_b64_tr_b16 {ar(bfrag(buf, t) + 2*h, 2)}, v{reg} offset:{kk*KST + h*8*ROWB + off}"])
        return L
    def mfma_list(buf):
        L = []
        for t in range(NT):
            for rt in range(2):
                L.append(f"v_mfma_f32_16x16x32_bf16 {vr(acc(rt,t),4)}, {ar(bfrag(buf,t),4)}, {ar(afrag(buf,rt),4)}, {vr(acc(rt,t),4)}")
            if t in halo_slots:
                hh = halo_slots.index(t)
                L.append(f"v_mfma_f32_16x16x32_bf16 {vr(HALO+4*hh,4)}, {ar(bfrag(buf,t),4)}, {ar(afrag(buf,2),4)}, {vr(HALO+4*hh,4)}")
        return L
    if Q:
        for r in range(NACC): a(f"v_mov_b32 v{ACC+r}, 0")
        emit(a, load_list())
        attn_setup(a, kind, halo_slots)
        a(f"s_waitcnt vmcnt({nL + TP + (1 if XT else 0)})")
    else:
        emit(a, load_list())
        repack_setup(a)
        a(f"s_waitcnt vmcnt({nL + TP + (1 if XT else 0)})")
        for t in range(NT):
            b = 100 + 2 * t
            for d in (acc(0, t), acc(1, t)):
                a(f"v_lshlrev_b32 v{d}, 16, v{b}")
                a(f"v_and_b32 v{d+1}, 0xffff0000, v{b}")
                a(f"v_lshlrev_b32 v{d+2}, 16, v{b+1}")
                a(f"v_and_b32 v{d+3}, 0xffff0000, v{b+1}")
    a("s_barrier")
    emit(a, rd_list(0, 0))
    emit(a, load_list(0))
    if stamps: a("s_memtime s[94:95]")
    if stamps: a("s_waitcnt lgkmcnt(0)")
    a.label(f"{P}_loop")
    import re
    bumps = [[f"v_add_u32 v{r}, s57, v{r}"] for r in bump]
    bumps.append(["s_add_u32 s58, s58, 1", f"s_cmp_eq_u32 s58, {R}", "s_cselect_b32 s58, 0, s58", f"s_cselect_b32 s57, {-(R-1)*STG}, s59"])
    l1 = load_list(1)
    nl1 = 4 if TP else 3
    cfg = SCHED.get(kind, ("spread", 6, 0, 0))
    mA = mfma_list(0); mB = mfma_list(1); nm = len(mA)
    seq = []
    if cfg[0] == "spread":
        _, X, tailA, tailB = cfg
        def spread(nm, lists):
            pos = [[] for _ in range(nm)]
            for groups, first, last in lists:
                k = len(groups)
                for j, g in enumerate(groups):
                    p = first + int(j * (last - first + 1) / k)
                    pos[p].append(g)
            return pos
        pa = spread(nm, [(rd_list(1, 1), 0, nm - 1 - tailA), (l1[:nl1], 2, nm - 1)])
        for i, m in enumerate(mA):
            seq.append(m)
            for g in pa[i]: seq += g
        pb1 = spread(X, [(bumps + l1[nl1:], 0, X - 1)])
        for i in range(X):
            seq.append(mB[i])
            for g in pb1[i]: seq += g
        seq.append("BARRIER")
        pb2 = spread(nm - X, [(rd_list(0, 0), 0, nm - X - 1 - tailB), (load_list(0), 1, nm - X - 1)])
        for i in range(nm - X):
            seq.append(mB[X + i])
            for g in pb2[i]: seq += g
    else:
        _, nb, phase = cfg
        def chunks(L, n):
            return [L[len(L) * i // n: len(L) * (i + 1) // n] for i in range(n)]
        def merge(rd, ld):
            out = list(rd)
            for j, g in enumerate(ld):
                out.insert(int((j + 0.5) * len(rd) / len(ld)) + j, g)
            return out
        MA = chunks(mA, nb); MB = chunks(mB, nb)
        OA = chunks(merge(rd_list(1, 1), l1[:nl1]), nb)
        OB = chunks(merge(rd_list(0, 0), load_list(0)), nb)
        misc = bumps + l1[nl1:]
        def addO(o):
            for g in o: seq.extend(g)
        if phase == 0:
            for k in range(nb):
                addO(OA[k]); seq.extend(MA[k] if k < nb - 1 else [])
            addO(misc); seq.extend(MA[nb - 1])
            seq.append("BARRIER")
            for k in range(nb):
                addO(OB[k]); seq.extend(MB[k])
        else:
            for k in range(nb):
                seq.extend(MA[k]); addO(OA[k])
            addO(misc)
            seq.append("BARRIER")
            for k in range(nb):
                seq.extend(MB[k]); addO(OB[k])
    def regs(tok):
        m = re.match(r"a\[(\d+):(\d+)\]", tok)
        return set(range(int(m.group(1)), int(m.group(2)) + 1)) if m else set()
    writer = {}; nlds = 0; guaranteed = -1; out = None
    for it in range(2):
        out = []
        for ins in seq:
            if ins == "BARRIER":
                out.append(f"s_waitcnt vmcnt({nL + (2 if TP else 0)}) lgkmcnt(0)")
                out.append("s_barrier")
                guaranteed = nlds - 1
            elif ins.startswith("ds_read"):
                for r in regs(ins.split()[1].rstrip(",")): writer[r] = nlds
                nlds += 1
                out.append(ins)
            elif ins.startswith("v_mfma"):
                toks = [t.strip() for t in ins.split(" ", 1)[1].split(", ")]
                need = max([writer.get(r, -1) for t in toks[1:3] for r in regs(t)])
                if need > guaranteed:
                    n = min(nlds - 1 - need, 14)
                    out.append(f"s_waitcnt lgkmcnt({n})")
                    guaranteed = nlds - 1 - n
                out.append(ins)
            else:
                out.append(ins)
    for ins in out: a(ins)
    a("s_sub_u32 s51, s51, 1")
    a("s_cmp_lg_u32 s51, 0")
    a(f"s_cbranch_scc1 {P}_loop")
    if stamps: a("s_memtime s[96:97]")
    if kind == "F":
        ffn_epilogue(a, acc)
    else:
        attn_head(a, kind, acc, HALO, NT, halo_slots)

QF = 100
def out_base(a):
    a(f"s_add_u32 s32, s10, {WS_A3}")
    a("s_addc_u32 s33, s11, 0")
    a(f"s_mov_b32 s34, {32*74*4096}")
    a("s_mov_b32 s35, 0x20000")
    a("s_lshl_b32 s60, s22, 3")
    a("s_lshl_b32 s61, s20, 1")
    a("s_add_u32 s60, s60, s61")
    a("s_lshr_b32 s61, s60, 2")
    a("s_mul_i32 s61, s61, 296")
    a("s_and_b32 s60, s60, 3")
    a("s_add_u32 s60, s60, s61")
    a("s_lshl_b32 s60, s60, 10")

def attn_setup(a, kind, halo_slots):
    I, Qr = V_I, V_Q
    nk = 3 if kind == "Q0" else 5
    out_base(a)
    a("s_lshl_b32 s62, s20, 5")
    a("s_add_u32 s62, s62, 16")
    a(f"v_add_u32 v120, s62, v{I}")
    a(f"v_mul_u32_u24 v120, {SK}, v120")
    a(f"v_lshl_add_u32 v120, v{Qr}, 3, v120")
    a(f"v_mul_u32_u24 v126, {SK}, v{I}")
    a(f"v_lshl_add_u32 v126, v{Qr}, 3, v126")
    for k in range(nk):
        a(f"v_add_u32 v{121+k}, s{52+k}, v120")
    for hh in range(len(halo_slots)):
        a(f"v_add_u32 v{127+hh}, s{52+hh}, v126")
    a(f"v_lshlrev_b32 v130, 4, v{V_LANE}")
    a("s_lshl_b32 s62, s20, 12")
    a(f"s_add_u32 s62, s62, {QX}")
    a("v_add_u32 v130, s62, v130")
    if kind == "Q0":
        for h in range(4):
            a(f"v_cmp_eq_u32 s[{72+2*h}:{73+2*h}], {h}, v{Qr}")
        a("v_mov_b32 v132, 0")
        a("v_mov_b32 v133, 0")
        a(f"v_and_b32 v131, 1, v{Qr}")
        a("v_lshlrev_b32 v131, 3, v131")
        a(f"v_lshlrev_b32 v134, 3, v{Qr}")
        a("v_sub_u32 v131, v131, v134")
        a("v_add_u32 v134, v120, v131")
        a("v_add_u32 v135, v126, v131")
    attn_setup2(a)

def attn_head(a, kind, acc, HALO, NT, halo_slots):
    first = 5 if kind == "Q0" else 0
    coff = 0 if kind == "Q0" else 96
    def wreg(s): return 121 + (s if kind == "Q0" else (0, 1, 2, 2, 3, 3, 4)[s])
    a("s_nop 7")
    for hh in range(len(halo_slots)):
        r = HALO + 4 * hh
        a(f"v_cvt_pk_bf16_f32 v{r}, v{r}, v{r+1}")
        a(f"v_cvt_pk_bf16_f32 v{r+1}, v{r+2}, v{r+3}")
        a(f"ds_write_b64 v{127+hh}, {vr(HALO+4*hh,2)} offset:{coff + 32*hh}")
    for t in range(first, NT):
        for rt in range(2):
            r = acc(rt, t); s_ = t - first
            a(f"v_cvt_pk_bf16_f32 v{r}, v{r}, v{r+1}")
            a(f"v_cvt_pk_bf16_f32 v{r+1}, v{r+2}, v{r+3}")
            a(f"ds_write_b64 v{wreg(s_)}, {vr(r,2)} offset:{rt*16*SK + coff + 32*s_}")
    if kind == "Q0":
        a(f"ds_write_b64 v134, v[132:133] offset:320")
        a(f"ds_write_b64 v134, v[132:133] offset:{16*SK+320}")
        a(f"ds_write_b64 v135, v[132:133] offset:320")
        for rt in range(2):
            tb = acc(rt, 4)
            a(f"v_cvt_pk_bf16_f32 v{tb}, v{tb}, v{tb+1}")
            a(f"v_cvt_pk_bf16_f32 v{tb+1}, v{tb+2}, v{tb+3}")
        for h in (2, 3, 0, 1):
            for rt in range(2):
                r = acc(rt, h); tb = acc(rt, 4)
                d = QF + (h * 2 + rt) * 4 if h < 2 else r
                a(f"v_cvt_pk_bf16_f32 v{d}, v{r}, v{r+1}")
                a(f"v_cvt_pk_bf16_f32 v{d+1}, v{r+2}, v{r+3}")
                a(f"v_cndmask_b32 v{d+2}, 0, v{tb}, s[{72+2*h}:{73+2*h}]")
                a(f"v_cndmask_b32 v{d+3}, 0, v{tb+1}, s[{72+2*h}:{73+2*h}]")
                if h >= 2:
                    a(f"ds_write_b128 v130, {vr(r,4)} offset:{((h-2)*2+rt)*1024}")
        a("s_branch K1Q_attn")

def attn_setup2(a):
    I, Qr = V_I, V_Q
    a(f"v_and_b32 v140, 1, v{I}")
    a(f"v_lshl_add_u32 v141, v{Qr}, 2, v140")
    a("v_cmp_eq_u32 s[84:85], 1, v140")
    a(f"v_cmp_le_u32 s[86:87], v141, v{I}")
    a("v_add_u32 v141, 2, v141")
    a(f"v_cmp_le_u32 s[88:89], v141, v{I}")
    a("v_mov_b32 v140, 0xffff")
    a("v_mov_b32 v141, 0xffff0000")
    a("v_cndmask_b32 v140, v140, v141, s[84:85]")
    a("v_cndmask_b32 v142, 0, v140, s[86:87]")
    a("v_cndmask_b32 v143, v140, 0, s[86:87]")
    a("v_cndmask_b32 v144, 0, v140, s[88:89]")
    a("v_cndmask_b32 v145, v140, 0, s[88:89]")
    a("s_or_b32 s62, s22, s20")
    a("s_cmp_eq_u32 s62, 0")
    a(f"s_cselect_b32 s62, {f32(-1e30)}, 0")
    a("v_mov_b32 v140, s62")
    a("v_cndmask_b32 v146, v140, 0, s[86:87]")
    a("v_cndmask_b32 v147, v140, 0, s[88:89]")
    a("s_lshl_b32 s62, s20, 5")
    a("s_mul_i32 s63, s47, 80")
    a(f"v_add_u32 v148, s62, v{I}")
    a(f"v_mul_u32_u24 v148, {SK}, v148")
    a("v_add_u32 v148, s63, v148")
    a("v_add_u32 v149, 32, v148")
    a(f"v_lshl_add_u32 v148, v{Qr}, 3, v148")
    a(f"v_lshrrev_b32 v150, 2, v{V_LANE}")
    a("v_add_u32 v150, s62, v150")
    a(f"v_mul_u32_u24 v150, {SK}, v150")
    a(f"v_and_b32 v151, 3, v{V_LANE}")
    a("s_lshl_b32 s66, s47, 1")
    for u in range(2):
        a(f"s_add_u32 s67, s66, {u}")
        a("v_cmp_eq_u32 vcc, s67, v151")
        a(f"s_add_u32 s67, s63, {160+40*u+32}")
        a("v_mov_b32 v140, s67")
        a("v_mov_b32 v141, 320")
        a("v_cndmask_b32 v140, v141, v140, vcc")
        a(f"v_add_u32 v{152+u}, v150, v140")
    a("v_lshl_add_u32 v150, v151, 3, v150")
    a("v_add_u32 v150, s63, v150")
    a("s_mul_i32 s62, s23, 20")
    def out_addr(dst, g):
        a(f"v_lshrrev_b32 v140, 3, v{g}")
        a("v_lshlrev_b32 v140, 12, v140")
        a(f"v_and_b32 v141, 3, v{g}")
        a("v_lshl_add_u32 v140, v141, 8, v140")
        a(f"v_bfe_u32 v141, v{g}, 2, 1")
        a("v_lshl_add_u32 v140, v141, 3, v140")
        a(f"v_lshl_add_u32 v{dst}, v{I}, 4, v140")
    a("s_mul_i32 s63, s47, 10")
    a("s_add_u32 s63, s63, s62")
    for u in range(2):
        a(f"s_add_u32 s67, s63, {5*u}")
        a(f"v_add_u32 v151, s67, v{Qr}")
        out_addr(154 + u, 151)
    a(f"v_mul_u32_u24 v151, 5, v{Qr}")
    a("s_add_u32 s63, s62, 4")
    a("v_add_u32 v151, s63, v151")
    out_addr(156, 151)
    a(f"s_mov_b32 s80, {f32(LOG2E * 20 ** -0.5)}")

def attn_common(a):
    I, Qr = V_I, V_Q
    a("s_waitcnt lgkmcnt(0)")
    a("s_barrier")
    def KF(u): return 0 + 24 * u
    def VM(u): return 12 + 24 * u
    def VT(u): return 18 + 24 * u
    def SS(c): return 32 + 8 * c
    def OT(rt): return 64 + 4 * rt
    def TM(c): return 72 + 4 * c
    def PF(c): return 116 + 4 * c
    def PK(c): return 88 + 2 * c
    a("s_cmp_eq_u32 s47, 0")
    a("s_cbranch_scc1 K1Q_haveq")
    for k in range(4):
        a(f"ds_read_b128 {vr(QF+4*k,4)}, v130 offset:{k*1024}")
    a.label("K1Q_haveq")
    for u in range(2):
        for j in range(3):
            a(f"ds_read_b64 {ar(KF(u)+4*j,2)}, v148 offset:{j*16*SK + 40*u}")
            a(f"ds_read_b64 {ar(KF(u)+4*j+2,2)}, v149 offset:{j*16*SK + 40*u}")
    for rt in range(2):
        for e in range(4): a(f"v_mov_b32 v{OT(rt)+e}, 0")
    chains = [(rt, 2*u + rt, u) for u in range(2) for rt in range(2)]
    a("s_waitcnt lgkmcnt(0)")
    for (rt, c, u) in chains:
        a(f"v_mfma_f32_16x16x32_bf16 {vr(SS(c),4)}, {ar(KF(u)+4*rt,4)}, {vr(QF+4*c,4)}, 0")
        a(f"v_mfma_f32_16x16x32_bf16 {vr(SS(c)+4,4)}, {ar(KF(u)+4*rt+4,4)}, {vr(QF+4*c,4)}, 0")
    for u in range(2):
        for j in range(3):
            a(f"ds_read_b64_tr_b16 {ar(VM(u)+2*j,2)}, v150 offset:{j*16*SK + 160 + 40*u}")
            a(f"ds_read_b64_tr_b16 {ar(VT(u)+2*j,2)}, v{152+u} offset:{j*16*SK}")
    def each(fn):
        for ch in chains: fn(*ch)
    def s1(rt, c, u):
        Sp = SS(c); Sc = Sp + 4; t = TM(c)
        a(f"v_cndmask_b32 v{t}, v{Sc}, v{Sc+1}, s[84:85]")
        a(f"v_cndmask_b32 v{t+1}, v{Sp}, v{Sp+1}, s[84:85]")
        a(f"v_cndmask_b32 v{t+2}, v{Sc+2}, v{Sc+3}, s[84:85]")
        a(f"v_cndmask_b32 v{t+3}, v{Sp+2}, v{Sp+3}, s[84:85]")
        a(f"v_cndmask_b32 v{t}, v{t+1}, v{t}, s[86:87]")
        a(f"v_cndmask_b32 v{t+2}, v{t+3}, v{t+2}, s[88:89]")
        if rt == 0:
            a(f"v_fma_f32 v{t}, v{t}, s80, v146")
            a(f"v_fma_f32 v{t+2}, v{t+2}, s80, v147")
        else:
            a(f"v_mul_f32 v{t}, s80, v{t}")
            a(f"v_mul_f32 v{t+2}, s80, v{t+2}")
        a(f"v_max_f32 v{t+1}, v{t}, v{t+2}")
        a(f"v_mov_b32 v{t+3}, v{t+1}")
    each(s1)
    a("s_nop 1")
    each(lambda rt, c, u: a(f"v_permlane32_swap_b32 v{TM(c)+1}, v{TM(c)+3}"))
    def s2(rt, c, u):
        t = TM(c)
        a(f"v_max_f32 v{t+1}, v{t+1}, v{t+3}")
        a(f"v_mov_b32 v{t+3}, v{t+1}")
    each(s2)
    a("s_nop 1")
    each(lambda rt, c, u: a(f"v_permlane16_swap_b32 v{TM(c)+1}, v{TM(c)+3}"))
    def s3(rt, c, u):
        t = TM(c)
        a(f"v_max_f32 v{t+1}, v{t+1}, v{t+3}")
        a(f"v_sub_f32 v{t}, v{t}, v{t+1}")
        a(f"v_sub_f32 v{t+2}, v{t+2}, v{t+1}")
        a(f"v_exp_f32 v{t}, v{t}")
        a(f"v_exp_f32 v{t+2}, v{t+2}")
    each(s3)
    a("s_nop 0")
    def s4(rt, c, u):
        t = TM(c)
        a(f"v_add_f32 v{t+1}, v{t}, v{t+2}")
        a(f"v_mov_b32 v{t+3}, v{t+1}")
    each(s4)
    a("s_nop 1")
    each(lambda rt, c, u: a(f"v_permlane32_swap_b32 v{TM(c)+1}, v{TM(c)+3}"))
    def s5(rt, c, u):
        t = TM(c)
        a(f"v_add_f32 v{t+1}, v{t+1}, v{t+3}")
        a(f"v_mov_b32 v{t+3}, v{t+1}")
    each(s5)
    a("s_nop 1")
    each(lambda rt, c, u: a(f"v_permlane16_swap_b32 v{TM(c)+1}, v{TM(c)+3}"))
    def s6(rt, c, u):
        t = TM(c)
        a(f"v_add_f32 v{t+1}, v{t+1}, v{t+3}")
        a(f"v_rcp_f32 v{t+1}, v{t+1}")
    each(s6)
    a("s_nop 0")
    def s7(rt, c, u):
        t = TM(c); pf = PF(c)
        a(f"v_mul_f32 v{t}, v{t}, v{t+1}")
        a(f"v_mul_f32 v{t+2}, v{t+2}, v{t+1}")
        a(f"v_cvt_pk_bf16_f32 v{t}, v{t}, v{t}")
        a(f"v_cvt_pk_bf16_f32 v{t+2}, v{t+2}, v{t+2}")
        a(f"v_and_b32 v{pf}, v{t}, v143")
        a(f"v_and_b32 v{pf+1}, v{t+2}, v145")
        a(f"v_and_b32 v{pf+2}, v{t}, v142")
        a(f"v_and_b32 v{pf+3}, v{t+2}, v144")
    each(s7)
    a("s_waitcnt lgkmcnt(0)")
    a("s_nop 0")
    for (rt, c, u) in chains:
        a(f"v_mfma_f32_16x16x32_bf16 {vr(SS(c),4)}, {ar(VM(u)+2*rt,4)}, {vr(PF(c),4)}, 0")
    for (rt, c, u) in chains:
        a(f"v_mfma_f32_16x16x32_bf16 {vr(OT(rt),4)}, {ar(VT(u)+2*rt,4)}, {vr(PF(c),4)}, {vr(OT(rt),4)}")
    a("s_nop 3")
    for (rt, c, u) in chains:
        o = SS(c); t = PK(c)
        a(f"v_cvt_pk_bf16_f32 v{t}, v{o}, v{o+1}")
        a(f"v_cvt_pk_bf16_f32 v{t+1}, v{o+2}, v{o+3}")
        a(f"buffer_store_dwordx2 {vr(t,2)}, v{154+u}, s[32:35], s60 offen offset:{rt*1024}")
    for rt in range(2):
        o = OT(rt); t = TM(rt)
        a(f"v_cvt_pk_bf16_f32 v{t}, v{o}, v{o+1}")
        a(f"v_cvt_pk_bf16_f32 v{t+1}, v{o+2}, v{o+3}")
    a("s_cmp_eq_u32 s47, 0")
    a("s_cselect_b32 exec_lo, -1, 0")
    a("s_cselect_b32 exec_hi, 0, -1")
    for rt in range(2):
        a(f"buffer_store_dwordx2 {vr(TM(rt),2)}, v156, s[32:35], s60 offen offset:{rt*1024}")
    a("s_mov_b64 exec, -1")

def finish(a, Q, stamps):
    P = "K1Q" if Q else "K1F"
    if stamps == "dbg":
        a("s_memtime s[92:93]")
        a("s_memrealtime s[86:87]")
        a("s_waitcnt lgkmcnt(0)")
        a(f"s_add_u32 s32, s10, {33<<20}")
        a("s_addc_u32 s33, s11, 0")
        a("s_sub_u32 s92, s92, s90")
        a("s_sub_u32 s94, s94, s90")
        a("s_mov_b32 s96, s99")
        a("s_mov_b32 s34, 64")
        a("s_mov_b32 s35, 0x20000")
        a("s_and_b32 s36, s2, 0x19f")
        a("s_or_b32 s36, s36, s41")
        a("s_lshr_b32 s37, s2, 1")
        a("s_cmp_eq_u32 s36, 0")
        a("s_cselect_b32 s36, s37, 0x1000")
        a("v_mov_b32 v10, s36")
        a("v_mov_b32 v12, s92")
        a("v_mov_b32 v13, s94")
        a("v_mov_b32 v14, s96")
        a("v_mov_b32 v15, s86")
        a("buffer_store_dwordx4 v[12:15], v10, s[32:35], 0 offen")
    elif stamps:
        a("s_memtime s[92:93]")
        a("s_waitcnt lgkmcnt(0)")
        if stamps in ("pro", "pro2"):
            a("s_mov_b32 s92, s94")
            a("s_mov_b32 s94, s98")
            a("s_mov_b32 s96, s99")
        a("s_sub_u32 s92, s92, s90")
        a("s_sub_u32 s94, s94, s90")
        a("s_sub_u32 s96, s96, s90")
        a(f"s_add_u32 s32, s10, {33<<20}")
        a("s_addc_u32 s33, s11, 0")
        a("s_mov_b32 s34, 0x100000")
        a("s_lshl_b32 s36, s2, 3")
        a("s_add_u32 s36, s36, s41")
        a("s_lshl_b32 s36, s36, 4")
        a("v_mov_b32 v10, s36")
        a("v_mov_b32 v12, s92")
        a("v_mov_b32 v13, s94")
        a("v_mov_b32 v14, s96")
        a("v_mov_b32 v15, s90")
        a("buffer_store_dwordx4 v[12:15], v10, s[32:35], 0 offen")
    a("s_endpgm")

def repack_setup(a):
    a("s_lshl_b32 s83, s22, 3")
    a("s_add_u32 s83, s83, s23")
    a("s_sub_u32 s62, s83, 34")
    a(f"s_mov_b32 s81, {1728*1280+4096}")
    a("s_cmp_lt_u32 s83, 34")
    a("s_cselect_b32 s83, s83, s62")
    a("s_cselect_b32 s74, s8, s16")
    a("s_cselect_b32 s75, s9, s17")
    a(f"s_cselect_b32 s76, {640*1280+4096}, s81")
    a("s_cselect_b32 s82, 0, 20")
    a("s_cselect_b32 s77, 20, 54")
    a("s_sub_u32 s74, s74, 4096")
    a("s_subb_u32 s75, s75, 0")
    a("s_mul_i32 s83, s83, 6")
    a(f"v_lshrrev_b32 v158, 3, v{V_LANE}")
    a("s_lshl_b32 s62, s41, 2")
    a("v_add_u32 v158, s62, v158")
    a("v_mul_u32_u24 v158, 0x500, v158")
    a(f"v_and_b32 v159, 7, v{V_LANE}")
    a("v_lshl_add_u32 v158, v159, 4, v158")
    for i in range(6):
        a(f"s_add_u32 s62, s83, {i}")
        a("s_mul_i32 s63, s62, 0x667")
        a("s_lshr_b32 s63, s63, 14")
        a("s_mul_i32 s72, s63, 10")
        a("s_sub_u32 s72, s62, s72")
        a("s_mul_i32 s63, s63, 40960")
        a("s_lshl_b32 s72, s72, 7")
        a("s_add_u32 s63, s63, s72")
        a(f"s_add_u32 s63, s63, {4096 - (i%3)*1024}")
        a(f"v_add_u32 v{114+i}, s63, v158")

def repack_swap(a):
    a.label("K1F_swap")
    for i in range(6): a(f"v_mov_b32 v{V_DMA+i}, v{114+i}")
    a("s_mov_b32 s28, s74")
    a("s_mov_b32 s29, s75")
    a("s_mov_b32 s30, s76")
    a("s_mov_b32 s44, 0")
    a("s_mov_b32 s50, 0")
    a("s_mov_b32 s64, -1")
    a("s_mov_b32 s65, 0")
    a("s_branch K1F_swapped")

def repack_store(a):
    a(f"v_mul_u32_u24 v158, 6144, v{V_Q}")
    a(f"v_bfe_u32 v159, v{V_LANE}, 2, 2")
    a("v_lshl_add_u32 v158, v159, 7, v158")
    a(f"v_and_b32 v159, 3, v{V_LANE}")
    a("v_lshl_add_u32 v158, v159, 3, v158")
    a("s_lshl_b32 s62, s20, 5")
    a("s_mul_i32 s63, s47, 3072")
    a("s_add_u32 s62, s62, s63")
    a(f"s_add_u32 s62, s62, {STG}")
    a("v_add_u32 v158, s62, v158")
    a(f"s_add_u32 s68, s10, {WS_W3}")
    a("s_addc_u32 s69, s11, 0")
    a(f"s_mov_b32 s70, {8*74*5120}")
    a("s_mov_b32 s71, 0x20000")
    a(f"v_lshlrev_b32 v159, 4, v{V_LANE}")
    for i in range(3):
        a(f"ds_read_b64_tr_b16 {vr(140+4*i,2)}, v158 offset:{1024*i}")
        a(f"ds_read_b64_tr_b16 {vr(142+4*i,2)}, v158 offset:{1024*i+4*6144}")
    a("s_mul_i32 s74, s47, 3")
    a("s_add_u32 s74, s74, s83")
    for i in range(3):
        a(f"s_add_u32 s62, s74, {i}")
        a("s_mul_i32 s75, s62, 0x667")
        a("s_lshr_b32 s75, s75, 14")
        a("s_mul_i32 s72, s75, 10")
        a("s_sub_u32 s72, s62, s72")
        a("s_lshl_b32 s72, s72, 2")
        a("s_add_u32 s72, s72, s20")
        a("s_mul_i32 s62, s72, 52")
        a("s_lshr_b32 s62, s62, 8")
        a("s_mul_i32 s63, s62, 5")
        a("s_sub_u32 s63, s72, s63")
        a("s_mul_i32 s62, s62, 74")
        a("s_add_u32 s62, s62, s75")
        a("s_add_u32 s62, s62, s82")
        a("s_mul_i32 s62, s62, 5")
        a("s_add_u32 s62, s62, s63")
        a("s_lshl_b32 s62, s62, 10")
        a("s_cmp_ge_u32 s75, s77")
        a("s_cselect_b32 s62, 0x7f000000, s62")
        a(f"s_waitcnt lgkmcnt({4-2*i})")
        a(f"buffer_store_dwordx4 {vr(140+4*i,4)}, v159, s[68:71], s62 offen")
    a("s_nop 1")

def ffn_epilogue(a, acc):
    repack_store(a)
    out_base(a)
    a("s_cmp_eq_u32 s47, 0")
    a("s_cbranch_scc0 K1F_mish")
    a("s_lshl_b32 s62, s22, 7")
    a("s_lshl_b32 s63, s23, 4")
    a("s_add_u32 s62, s62, s63")
    a("s_lshl_b32 s63, s20, 2")
    a("s_add_u32 s62, s62, s63")
    a(f"v_add_u32 v156, s62, v{V_Q}")
    a(f"v_mul_u32_u24 v157, 80, v{V_I}")
    a("v_mul_u32_u24 v158, 0x500, v156")
    a("v_add_u32 v158, v158, v157")
    a("s_mov_b32 s84, s18")
    a("s_mov_b32 s85, s19")
    a("s_mov_b32 s86, 1280")
    a("s_mov_b32 s87, 0x20000")
    for i in range(5):
        a(f"buffer_load_dwordx4 {vr(112+4*i,4)}, v158, s[24:27], 0 offen offset:{16*i}")
        a(f"buffer_load_dwordx4 {vr(132+4*i,4)}, v157, s[84:87], 0 offen offset:{16*i}")
    a.label("K1F_mish")
    a("s_add_u32 s62, s42, 20")
    a("s_lshl_b32 s62, s62, 12")
    a("s_add_u32 s62, s62, s60")
    a("s_lshl_b32 s63, s47, 3")
    a("s_add_u32 s63, s63, s62")
    a(f"s_add_u32 s63, s63, {3*4096}")
    a("s_lshl_b32 s66, s47, 14")
    a("s_add_u32 s62, s62, s66")
    a(f"v_lshlrev_b32 v159, 4, v{V_LANE}")
    a(f"s_mov_b32 s88, {f32(LOG2E)}")
    a(f"s_mov_b32 s89, {f32(LOG2E)}")
    a("v_mov_b32 v104, 1.0")
    a("v_mov_b32 v105, 1.0")
    a("v_mov_b32 v106, -2.0")
    a("v_mov_b32 v107, -2.0")
    def mish(prs, T):
        n = len(prs)
        for i, r in enumerate(prs): a(f"v_pk_mul_f32 {vr(T+2*i,2)}, {vr(r,2)}, s[88:89]")
        for i in range(2*n): a(f"v_exp_f32 v{T+i}, v{T+i}")
        for i in range(n): a(f"v_pk_add_f32 {vr(T+2*i,2)}, {vr(T+2*i,2)}, v[104:105]")
        for i in range(n): a(f"v_pk_fma_f32 {vr(T+2*i,2)}, {vr(T+2*i,2)}, {vr(T+2*i,2)}, v[104:105]")
        for i in range(2*n): a(f"v_rcp_f32 v{T+i}, v{T+i}")
        for i in range(n): a(f"v_pk_fma_f32 {vr(T+2*i,2)}, {vr(T+2*i,2)}, v[106:107], v[104:105]")
        for i, r in enumerate(prs): a(f"v_pk_mul_f32 {vr(T+2*i,2)}, {vr(T+2*i,2)}, {vr(r,2)}")
    for p in range(3):
        if p == 2:
            a("s_lshl_b32 s66, s47, 3")
            a("s_add_u32 s66, s66, s23")
            a("s_cmp_lt_u32 s66, 14")
            a("s_cselect_b32 s62, s62, 0x7f000000")
        for rt in range(2):
            T = 88 + 8 * rt
            prs = [acc(rt, 2*p), acc(rt, 2*p) + 2, acc(rt, 2*p+1), acc(rt, 2*p+1) + 2]
            mish(prs, T)
            d = acc(rt, 2*p)
            for i in range(4): a(f"v_cvt_pk_bf16_f32 v{d+i}, v{T+2*i}, v{T+2*i+1}")
            a(f"buffer_store_dwordx4 {vr(d,4)}, v159, s[32:35], s62 offen offset:{rt*1024}")
        a("s_add_u32 s62, s62, 4096")
    prs = [acc(0, 6), acc(0, 6) + 2, acc(1, 6), acc(1, 6) + 2]
    mish(prs, 88)
    d = acc(0, 6)
    for i in range(4): a(f"v_cvt_pk_bf16_f32 v{d+i}, v{88+2*i}, v{88+2*i+1}")
    a(f"buffer_store_dwordx2 {vr(d,2)}, v159, s[32:35], s63 offen")
    a(f"buffer_store_dwordx2 {vr(d+2,2)}, v159, s[32:35], s63 offen offset:1024")
    a("s_cmp_eq_u32 s47, 0")
    a("s_cbranch_scc0 K1F_nogate")
    a("s_waitcnt vmcnt(8)")
    a("v_mov_b32 v88, 0")
    for i in range(20):
        a(f"v_dot2c_f32_bf16 v88, v{112+i}, v{132+i}")
    a("s_nop 3")
    for sh in (8, 4, 2, 1):
        a(f"v_add_f32_dpp v88, v88, v88 row_ror:{sh} row_mask:0xf bank_mask:0xf")
        a("s_nop 1")
    a("v_mul_f32 v88, s88, v88")
    a("v_exp_f32 v88, -v88")
    a("s_nop 0")
    a("v_add_f32 v88, 1.0, v88")
    a("v_rcp_f32 v88, v88")
    a(f"s_add_u32 s84, s10, {WS_G}")
    a("s_addc_u32 s85, s11, 0")
    a("s_mov_b32 s86, 8192")
    a("s_mov_b32 s87, 0x20000")
    a("v_lshlrev_b32 v156, 2, v156")
    a(f"v_cmp_eq_u32 vcc, 0, v{V_I}")
    a("s_and_saveexec_b64 s[76:77], vcc")
    a("buffer_store_dword v88, v156, s[84:87], 0 offen")
    a("s_mov_b64 exec, s[76:77]")
    a.label("K1F_nogate")

if __name__ == "__main__":
    import sys
    opt = sys.argv[2] if len(sys.argv) > 2 else ""
    a = Asm()
    info = gen_k1(a, "k1_kernel", stamps=True, rot=("norot" not in opt), abl=opt, prio=("prio" in opt), sched=eval(sys.argv[3]) if len(sys.argv) > 3 else None)
    hdr = f"; @launch kernel=k1_kernel grid=(256,1,1) block=(512,1,1) lds={info['lds']}\n"
    hdr += '.amdgcn_target "amdgcn-amd-amdhsa--gfx950"\n.text\n'
    txt = hdr + a.text() + '.section .rodata,"a"\n.p2align 6\n' + descriptor("k1_kernel", info['nvgpr'], info['nsgpr'], info['accum'])
    open(sys.argv[1], "w").write(txt)
```

```python
from asmlib import *

WS_A3 = 0
A3_BYTES = 32 * 74 * 4096
WS_W3 = 10 << 20
W3_BYTES = 8 * 74 * 5120
WS_G = 16 << 20
NKS = 74

def gen_k3(a0, name, D=6, stamps=False, abl="", rot=0, xmap=0, touch=None):
    class Filt:
        def __call__(self, ln):
            if "noA" in abl and "s[12:15], s31" in ln: ln = ln.replace("s31 offen", "s38 offen")
            if "noB" in abl and "s[16:19], s32" in ln: ln = ln.replace("s32 offen", "s38 offen")
            if "noM" in abl and ln.startswith("v_mfma"): return
            a0(ln)
        def label(self, n): a0.label(n)
        L = a0.L
    a = Filt()
    kernel_header(a, name)
    if abl: a("s_mov_b32 s38, 0x7f000000")
    ACC = 16
    def acc(rt, t): return ACC + (rt * 5 + t) * 4
    def afrag(slot, rt): return slot * 36 + rt * 4
    def bfrag(slot, t): return slot * 36 + 16 + t * 4
    WAVE_LDS = 20480
    a("s_cmp_ge_u32 s2, 256")
    a("s_cbranch_scc1 K3_done")
    if stamps: a("s_memtime s[40:41]")
    if stamps == "dbg":
        a("s_memrealtime s[44:45]")
        a("s_waitcnt lgkmcnt(0)")
    a("s_load_dwordx2 s[8:9], s[0:1], 64")
    a("s_load_dwordx2 s[10:11], s[0:1], 80")
    a("v_lshrrev_b32 v8, 6, v0")
    a("v_and_b32 v9, 63, v0")
    a("v_readfirstlane_b32 s28, v8")
    a("v_lshlrev_b32 v1, 4, v9")
    a("v_add_u32 v2, 4096, v1")
    a("s_and_b32 s3, s2, 7")
    a("s_lshr_b32 s29, s2, 3")
    if xmap == 0:
        a("s_lshr_b32 s30, s3, 1")
        a("s_lshl_b32 s30, s30, 3")
        a("s_lshr_b32 s31, s29, 2")
        a("s_and_b32 s29, s29, 3")
        a("s_lshl_b32 s39, s29, 1")
        a("s_add_u32 s39, s39, s31")
        a("s_and_b32 s39, s39, 7")
        a("s_add_u32 s31, s31, s30")
        a("s_and_b32 s30, s3, 1")
        a("s_lshl_b32 s30, s30, 2")
        a("s_add_u32 s30, s30, s29")
        a("s_mov_b32 s29, s31")
    else:
        a("s_lshr_b32 s31, s29, 3")
        a("s_and_b32 s30, s29, 7")
        a("s_lshl_b32 s39, s31, 1")
        a("s_add_u32 s39, s39, s30")
        a("s_and_b32 s39, s39, 7")
        a("s_lshl_b32 s29, s3, 2")
        a("s_add_u32 s29, s29, s31")
    if touch:
        assert xmap == 0
        a("s_cmp_eq_u32 s28, 4")
        a("s_cbranch_scc1 K3_touch")
    a("s_mul_i32 s34, s28, 18")
    a("s_add_u32 s34, s34, 2")
    a("s_cmp_eq_u32 s28, 0")
    a("s_cselect_b32 s34, 0, s34")
    a("s_cselect_b32 s35, 20, 18")
    if rot == 9:
        a("s_mul_i32 s39, s39, s35")
        a("s_lshr_b32 s39, s39, 3")
    elif rot == 10:
        a("s_mul_i32 s39, s3, s35")
        a("s_lshr_b32 s39, s39, 3")
    elif rot in (11, 12):
        a(f"s_and_b32 s39, s39, {1 if rot == 11 else 3}")
        a("s_mul_i32 s36, s3, s35")
        a("s_lshr_b32 s36, s36, 3")
        a("s_add_u32 s39, s39, s36")
        a("s_cmp_ge_u32 s39, s35")
        a("s_cselect_b32 s36, s35, 0")
        a("s_sub_u32 s39, s39, s36")
    elif rot:
        a(f"s_mul_i32 s39, s39, {rot}")
        a("s_lshr_b32 s39, s39, 1")
    else:
        a("s_mov_b32 s39, 0")
    a("s_lshl_b32 s31, s39, 12")
    a("s_mul_i32 s32, s39, 5120")
    a("s_lshl_b32 s14, s35, 12")
    a("s_mul_i32 s18, s35, 5120")
    a("s_mul_i32 s37, s29, 74")
    a("s_add_u32 s37, s37, s34")
    a("s_lshl_b32 s37, s37, 12")
    a("s_mul_i32 s36, s30, 74")
    a("s_add_u32 s36, s36, s34")
    a("s_mul_i32 s36, s36, 5120")
    a(f"s_add_u32 s36, s36, {WS_W3}")
    a("s_mov_b32 s15, 0x20000")
    a("s_mov_b32 s19, 0x20000")
    a(f"s_mul_i32 s33, s28, {WAVE_LDS}")
    a("s_waitcnt lgkmcnt(0)")
    a("s_add_u32 s16, s10, s36")
    a("s_addc_u32 s17, s11, 0")
    a("s_add_u32 s12, s10, s37")
    a("s_addc_u32 s13, s11, 0")
    def adv():
        a("s_add_u32 s31, s31, 4096")
        a("s_add_u32 s32, s32, 5120")
        if rot:
            a("s_cmp_eq_u32 s31, s14")
            a("s_cselect_b32 s31, 0, s31")
            a("s_cselect_b32 s32, 0, s32")
    def loadB(slot, t):
        if t < 4: return f"buffer_load_dwordx4 {ar(bfrag(slot, t), 4)}, v1, s[16:19], s32 offen offset:{t*1024}"
        return f"buffer_load_dwordx4 {ar(bfrag(slot, t), 4)}, v2, s[16:19], s32 offen"
    def loadA(slot, rt):
        return f"buffer_load_dwordx4 {ar(afrag(slot, rt), 4)}, v1, s[12:15], s31 offen offset:{rt*1024}"
    def issue(slot):
        for t in range(5): a(loadB(slot, t))
        for rt in range(4): a(loadA(slot, rt))
        adv()
    def common_setup():
        a(f"s_add_u32 s24, s10, {WS_G}")
        a("s_addc_u32 s25, s11, 0")
        a("s_mov_b32 s26, 8192")
        a("s_mov_b32 s27, 0x20000")
        a("s_mov_b32 s20, s8")
        a("s_mov_b32 s21, s9")
        a(f"s_mov_b32 s22, {2048*640*2}")
        a("s_mov_b32 s23, 0x20000")
        for r in range(80):
            a(f"v_mov_b32 v{ACC+r}, 0")
    e0 = (-20) % D; e1 = (-18) % D
    it0 = (20 + e0) // D - 1; it1 = (18 + e1) // D - 1
    def prologue(e, iters):
        for s in range(D):
            issue((e + s) % D)
        a(f"s_mov_b32 s34, {iters}")
        a(f"s_mov_b32 s35, {e}")
        a(f"s_branch K3_common")
    a("s_cmp_eq_u32 s28, 0")
    a("s_cbranch_scc0 K3_pro1")
    prologue(e0, it0)
    a.label("K3_pro1")
    prologue(e1, it1)
    a.label("K3_common")
    common_setup()
    if stamps is True:
        a(f"s_waitcnt vmcnt({9*(D-1)})")
        a("s_memtime s[48:49]")
    if e0 != 0:
        a(f"s_cmp_eq_u32 s35, {e0}")
        a(f"s_cbranch_scc1 K3_step{e0}")
    if e1 != 0 and e1 != e0:
        a(f"s_cmp_eq_u32 s35, {e1}")
        a(f"s_cbranch_scc1 K3_step{e1}")
    def step(j, loads, wait_n):
        a(f"s_waitcnt vmcnt({wait_n})")
        for t in range(5):
            for rt in range(4):
                a(f"v_mfma_f32_16x16x32_bf16 {vr(acc(rt,t),4)}, {ar(bfrag(j,t),4)}, {ar(afrag(j,rt),4)}, {vr(acc(rt,t),4)}")
            if loads: a(loadB(j, t))
        if loads:
            for rt in range(4): a(loadA(j, rt))
            adv()
    for j in range(D):
        a.label(f"K3_step{j}")
        step(j, True, 9 * (D - 1))
    a("s_sub_u32 s34, s34, 1")
    a("s_cmp_lg_u32 s34, 0")
    a("s_cbranch_scc1 K3_step0")
    for j in range(D):
        step(j, False, 9 * (D - 1 - j))
    if stamps is True: a("s_memtime s[50:51]")
    a("s_lshl_b32 s36, s29, 6")
    a("s_lshl_b32 s37, s28, 4")
    a("s_add_u32 s36, s36, s37")
    a("v_and_b32 v10, 15, v9")
    a("v_add_u32 v10, s36, v10")
    a("v_lshlrev_b32 v11, 2, v10")
    a("buffer_load_dword v12, v11, s[24:27], 0 offen")
    a("v_add_u32 v13, s33, v1")
    a("s_nop 7")
    for rt in range(4):
        for t in range(5):
            a(f"ds_write_b128 v13, {vr(acc(rt,t),4)} offset:{(rt*5+t)*1024}")
    a("s_mul_i32 s37, s28, 5120")
    a("v_add_u32 v13, s37, v1")
    a("s_waitcnt lgkmcnt(0)")
    a("s_barrier")
    for src in range(4):
        for t in range(5):
            off = src * WAVE_LDS + t * 1024
            if src * WAVE_LDS + 4096 < 65536:
                a(f"ds_read_b128 {vr(acc(src,t),4)}, v13 offset:{off}")
            else:
                if t == 0: a(f"v_add_u32 v14, {src*WAVE_LDS}, v13")
                a(f"ds_read_b128 {vr(acc(src,t),4)}, v14 offset:{t*1024}")
    a("v_mul_u32_u24 v10, 0x500, v10")
    a("v_lshrrev_b32 v11, 4, v9")
    a("v_lshl_add_u32 v10, v11, 3, v10")
    a("s_mul_i32 s37, s30, 160")
    a("v_add_u32 v10, s37, v10")
    a("s_waitcnt vmcnt(0) lgkmcnt(0)")
    for t in range(5):
        for e in range(4):
            A_, B1, B2, B3 = acc(0,t)+e, acc(1,t)+e, acc(2,t)+e, acc(3,t)+e
            a(f"v_add_f32 v{B1}, v{B1}, v{B2}")
            a(f"v_add_f32 v{B1}, v{B1}, v{B3}")
            a(f"v_sub_f32 v{A_}, v{A_}, v{B1}")
            a(f"v_fmac_f32 v{B1}, v12, v{A_}")
        b = acc(1,t)
        a(f"v_cvt_pk_bf16_f32 v{acc(0,t)}, v{b}, v{b+1}")
        a(f"v_cvt_pk_bf16_f32 v{acc(0,t)+1}, v{b+2}, v{b+3}")
        a(f"buffer_store_dwordx2 {vr(acc(0,t),2)}, v10, s[20:23], 0 offen offset:{32*t}")
    if stamps == "dbg":
        a("s_memtime s[42:43]")
        a("s_memrealtime s[46:47]")
        a("s_load_dwordx2 s[20:21], s[0:1], 72")
        a("s_waitcnt vmcnt(0) lgkmcnt(0)")
        a("s_or_b32 s36, s2, s28")
        a("s_cmp_lg_u32 s36, 0")
        a("s_cbranch_scc1 K3_done")
        a("s_sub_u32 s42, s42, s40")
        a(f"s_add_u32 s24, s10, {33<<20}")
        a("s_addc_u32 s25, s11, 0")
        a("s_mov_b32 s26, 64")
        a("s_mov_b32 s22, 64")
        a("v_mov_b32 v10, 0")
        a("buffer_load_dwordx4 v[12:15], v10, s[24:27], 0 offen")
        a("buffer_load_dwordx4 v[16:19], v10, s[24:27], 0 offen offset:16")
        a("v_mov_b32 v20, s42")
        a("v_mov_b32 v21, 0")
        a("v_mov_b32 v22, s44")
        a("v_mov_b32 v23, s46")
        a("s_waitcnt vmcnt(0)")
        a("buffer_store_dwordx4 v[12:15], v10, s[20:23], 0 offen")
        a("buffer_store_dwordx4 v[16:19], v10, s[20:23], 0 offen offset:16")
        a("buffer_store_dwordx4 v[20:23], v10, s[20:23], 0 offen offset:32")
    elif stamps:
        a("s_memtime s[42:43]")
        a("s_waitcnt lgkmcnt(0)")
        a("s_sub_u32 s42, s42, s40")
        a("s_sub_u32 s48, s48, s40")
        a("s_sub_u32 s50, s50, s40")
        a(f"s_add_u32 s24, s10, {32<<20}")
        a("s_addc_u32 s25, s11, 0")
        a("s_mov_b32 s26, 0x100000")
        a("s_lshl_b32 s36, s2, 2")
        a("s_add_u32 s36, s36, s28")
        a("s_lshl_b32 s36, s36, 4")
        a("v_mov_b32 v10, s36")
        a("v_mov_b32 v12, s42")
        a("v_mov_b32 v13, s48")
        a("v_mov_b32 v14, s50")
        a("v_mov_b32 v15, s40")
        a("buffer_store_dwordx4 v[12:15], v10, s[24:27], 0 offen")
    a.label("K3_done")
    a("s_endpgm")
    if touch:
        r0, infl = touch
        a.label("K3_touch")
        a("v_mul_u32_u24 v10, 0x4f, v9")
        a("v_lshrrev_b32 v10, 10, v10")
        a("v_mul_u32_u24 v11, 13, v10")
        a("v_sub_u32 v11, v9, v11")
        a("v_mul_u32_u24 v12, 18, v10")
        a(f"v_add_u32 v12, {2 + r0}, v12")
        a("v_cmp_eq_u32 vcc, 0, v10")
        a("s_nop 1")
        a(f"v_cndmask_b32 v12, v12, {r0}, vcc")
        a("s_mul_i32 s36, s29, 74")
        a("v_add_u32 v13, s36, v12")
        a("v_lshlrev_b32 v13, 12, v13")
        a("v_lshl_add_u32 v13, v11, 7, v13")
        a("s_and_b32 s36, s30, 3")
        a("s_lshl_b32 s36, s36, 10")
        a("v_add_u32 v13, s36, v13")
        a("s_mul_i32 s36, s30, 74")
        a("v_add_u32 v14, s36, v12")
        a("v_mul_u32_u24 v14, 5120, v14")
        a("v_lshl_add_u32 v14, v11, 7, v14")
        a("s_and_b32 s36, s29, 7")
        a("s_mul_i32 s36, s36, 640")
        a(f"s_add_u32 s36, s36, {WS_W3 - 1024}")
        a("v_add_u32 v14, s36, v14")
        a("v_cmp_gt_u32 vcc, 8, v11")
        a("v_mov_b32 v15, 5120")
        a("v_mov_b32 v16, 4096")
        a("v_cndmask_b32 v13, v14, v13, vcc")
        a("v_cndmask_b32 v15, v15, v16, vcc")
        a("s_waitcnt lgkmcnt(0)")
        a("s_mov_b32 s12, s10")
        a("s_mov_b32 s13, s11")
        a(f"s_mov_b32 s14, {WS_W3 + W3_BYTES}")
        a("s_mov_b32 s15, 0x20000")
        a("s_mov_b32 exec_hi, 0xfffff")
        for r in range(r0, 20):
            a(f"buffer_load_dword v{20 + (r & 7)}, v13, s[12:15], 0 offen")
            a("v_add_u32 v13, v13, v15")
            a(f"s_waitcnt vmcnt({infl})")
        a("s_endpgm")
    lds = 4 * WAVE_LDS
    nagpr = 36 * D
    return dict(lds=lds, nvgpr=96 + nagpr, accum=96, nsgpr=56, block=(320 if touch else 256))

if __name__ == "__main__":
    import sys
    D = int(sys.argv[2]) if len(sys.argv) > 2 else 4
    opt = sys.argv[3] if len(sys.argv) > 3 else ""
    a = Asm()
    info = gen_k3(a, "k3_kernel", D=D, stamps=True, abl=opt, rot=(int(opt[opt.index("R")+1]) if "R" in opt else 0), xmap=(1 if "x1" in opt else 0))
    hdr = f"; @launch kernel=k3_kernel grid=(256,1,1) block=(256,1,1) lds={info['lds']}\n"
    hdr += '.amdgcn_target "amdgcn-amd-amdhsa--gfx950"\n.text\n'
    txt = hdr + a.text() + '.section .rodata,"a"\n.p2align 6\n' + descriptor("k3_kernel", info['nvgpr'], info['nsgpr'], info['accum'])
    open(sys.argv[1], "w").write(txt)
```
